```python
import torch

def _softmax(x, axis=-1):
    return torch.softmax(x, dim=axis)
def _gelu(x):
    return torch.nn.functional.gelu(x, approximate="tanh")
def _silu(x):
    return torch.nn.functional.silu(x)
def _sigmoid(x):
    return torch.sigmoid(x)
def _layernorm(x, axis=-1, eps=1e-5):
    m = x.mean(dim=axis, keepdim=True)
    v = x.var(dim=axis, keepdim=True, unbiased=False)
    return (x - m) / torch.sqrt(v + eps)
def _scatter_add(tgt, idx, src, axis=0):
    return tgt.clone().index_add_(axis, idx, src)
def _segment_sum(src, seg, n):
    out = torch.zeros((n,) + src.shape[1:], dtype=src.dtype)
    return out.index_add_(0, seg, src)
def _pad(x, pw):
    flat = tuple(v for pair in reversed(pw) for v in pair)
    return torch.nn.functional.pad(x, flat)

kernel_name = 'concat_heads__gqa_block_cached__mha_block_cached__near_ridge'

def setup_inputs():

    _w = (lambda a: (lambda t: t.to(torch.bfloat16) if t.is_floating_point() else t)(torch.as_tensor(a)))
    def _A_setup():
        B, Sq, D = 8, 112, 640
        Hq, Hkv, Sk, Dh = 32, 32, 512, 192
        assert Hq % Hkv == 0, (Hq, Hkv)
        return {
            "x": _w((lambda *s: torch.randn(*s, dtype=torch.bfloat16) * 0.8)(B, Sq, D)),
            "k_cache": _w((lambda *s: torch.randn(*s, dtype=torch.bfloat16) * 0.8)(B, Hkv, Sk, Dh)),
            "v_cache": _w((lambda *s: torch.randn(*s, dtype=torch.bfloat16) * 0.05)(B, Hkv, Sk, Dh)),
            "wq": _w((lambda *s: torch.randn(*s, dtype=torch.bfloat16) * 0.8)(D, Hq * Dh) * (D ** -0.5)),
            "wo": _w((lambda *s: torch.randn(*s, dtype=torch.bfloat16) * 0.05)(Hq * Dh, D) * ((Hq * Dh) ** -0.5)),
        }
    _A_in = _A_setup()

    def _B_setup():
        B, Sq, D = 8, 112, 640
        H, Sk, Dh = 32, 512, 192
        return {
            "x": _w((lambda *s: torch.randn(*s, dtype=torch.bfloat16) * 0.8)(B, Sq, D)),
            "k_cache": _w((lambda *s: torch.randn(*s, dtype=torch.bfloat16) * 0.8)(B, H, Sk, Dh)),
            "v_cache": _w((lambda *s: torch.randn(*s, dtype=torch.bfloat16) * 0.05)(B, H, Sk, Dh)),
            "wq": _w((lambda *s: torch.randn(*s, dtype=torch.bfloat16) * 0.8)(D, H * Dh) * (D ** -0.5)),
            "wo": _w((lambda *s: torch.randn(*s, dtype=torch.bfloat16) * 0.05)(H * Dh, D) * ((H * Dh) ** -0.5)),
        }
    _B_in = _B_setup()

    return {
        "A_x": _A_in["x"],
        "A_k_cache": _A_in["k_cache"],
        "A_v_cache": _A_in["v_cache"],
        "A_wq": _A_in["wq"],
        "A_wo": _A_in["wo"],
        "B_x": _B_in["x"],
        "B_k_cache": _B_in["k_cache"],
        "B_v_cache": _B_in["v_cache"],
        "B_wq": _B_in["wq"],
        "B_wo": _B_in["wo"],
    }

def reference(A_x, A_k_cache, A_v_cache, A_wq, A_wo, B_x, B_k_cache, B_v_cache, B_wq, B_wo):
    def _A_ref(x, k_cache, v_cache, wq, wo):
        B, Sq, D = x.shape
        Hq, Dh = 32, 192
        Hkv = k_cache.shape[1]
        rep = Hq // Hkv
        q = (lambda x, *d: x.permute(*d))((x @ wq).reshape(B, Sq, Hq, Dh), 0, 2, 1, 3)
        k = (lambda x, n, axis: torch.repeat_interleave(x, n, dim=axis))(k_cache, rep, axis=1)
        v = (lambda x, n, axis: torch.repeat_interleave(x, n, dim=axis))(v_cache, rep, axis=1)
        scores = torch.einsum("bhqd,bhkd->bhqk", q, k) * (Dh ** -0.5)
        p = _softmax(scores, axis=-1)
        o = torch.einsum("bhqk,bhkd->bhqd", p, v)
        return (lambda x, *d: x.permute(*d))(o, 0, 2, 1, 3).reshape(B, Sq, Hq * Dh) @ wo

    def _B_ref(x, k_cache, v_cache, wq, wo):
        B, Sq, D = x.shape
        H, Dh = 32, 192
        q = (lambda x, *d: x.permute(*d))((x @ wq).reshape(B, Sq, H, Dh), 0, 2, 1, 3)
        scores = torch.einsum("bhqd,bhkd->bhqk", q, k_cache) * (Dh ** -0.5)
        p = _softmax(scores, axis=-1)
        o = torch.einsum("bhqk,bhkd->bhqd", p, v_cache)
        return (lambda x, *d: x.permute(*d))(o, 0, 2, 1, 3).reshape(B, Sq, H * Dh) @ wo

    a = _A_ref(A_x, A_k_cache, A_v_cache, A_wq, A_wo)
    b = _B_ref(B_x, B_k_cache, B_v_cache, B_wq, B_wo)
    return torch.concatenate([a, b], axis=-1)
```

```python
def R(f, n, cnt=1):
    return [f"{f}{n + i}" for i in range(cnt)]


def T(f, n, cnt=1):
    if cnt == 1:
        return f"{f}{n}"
    return f"{f}[{n}:{n + cnt - 1}]"


class Reg:
    def __init__(self, f, n, cnt=1):
        self.f, self.n, self.cnt = f, n, cnt

    def __str__(self):
        return T(self.f, self.n, self.cnt)

    def regs(self):
        return R(self.f, self.n, self.cnt)

    def sub(self, off, cnt=1):
        assert off + cnt <= self.cnt, (self.f, self.n, self.cnt, off, cnt)
        return Reg(self.f, self.n + off, cnt)

    def __getitem__(self, i):
        return self.sub(i, 1)


def v(n, cnt=1):
    return Reg("v", n, cnt)


def a(n, cnt=1):
    return Reg("a", n, cnt)


def s(n, cnt=1):
    return Reg("s", n, cnt)


def _regs(x):
    out = []
    for y in x:
        if isinstance(y, Reg):
            out += y.regs()
        elif isinstance(y, str) and y in ("vcc", "m0", "scc", "exec"):
            out.append(y)
    return out


class Em:
    def __init__(self):
        self.lines = []
        self.pos = 0
        self.vw = {}
        self.tw = {}
        self.mw = {}
        self.mc = {}
        self.sw = {}
        self.m0w = -100
        self.stw = {}
        self.lds = []
        self.nlabel = 0
        self.ninst = 0
        self.stats = {}

    def raw(self, text):
        self.lines.append(text)

    def comment(self, text):
        self.lines.append("; " + text)

    def label(self, name):
        self.lines.append(name + ":")

    def newlabel(self, base="L"):
        self.nlabel += 1
        return f"{base}_{self.nlabel}"

    def _put(self, text, states=1):
        self.lines.append("  " + text)
        self.pos += states
        self.ninst += 1
        op = text.split()[0]
        self.stats[op] = self.stats.get(op, 0) + 1

    def nop(self, n):
        while n > 0:
            k = min(n, 16)
            self._put(f"s_nop {k - 1}", k)
            n -= k

    def fence(self):
        need = 0
        for d, w in ((self.vw, 2), (self.tw, 1), (self.mc, 7), (self.sw, 5), (self.stw, 2)):
            for p in d.values():
                need = max(need, w - (self.pos - p - 1))
        for p, _ in self.mw.values():
            need = max(need, 12 - (self.pos - p - 1))
        need = max(need, 1 - (self.pos - self.m0w - 1))
        if need > 0:
            self.nop(need)

    def wait_lds_for(self, regs):
        regs = set(regs)
        idx = -1
        for i, d in enumerate(self.lds):
            if d & regs:
                idx = i
        if idx >= 0:
            n = len(self.lds) - 1 - idx
            self._put(f"s_waitcnt lgkmcnt({min(n, 15)})")
            if n > 15:
                self.lds = self.lds[len(self.lds) - 15:]
            else:
                self.lds = self.lds[idx + 1:]

    def wait_lds_all(self):
        if self.lds:
            self._put("s_waitcnt lgkmcnt(0)")
            self.lds = []

    def I(self, text, r=(), w=(), k="valu", c=None):
        rr, ww = _regs(r), _regs(w)
        cc = c.regs() if c is not None else []
        self.wait_lds_for(rr + ww + cc)
        need = 0

        def req(p, n):
            nonlocal need
            need = max(need, n - (self.pos - p - 1))

        if k == "mfma":
            for x in rr:
                if x in self.vw: req(self.vw[x], 2)
                if x in self.mw: req(self.mw[x][0], 12)
            cid = str(c) if c is not None else None
            for x in cc:
                if x in self.vw: req(self.vw[x], 2)
                if x in self.mw and self.mw[x][1] != cid: req(self.mw[x][0], 10)
            did = str(w[0])
            for x in ww:
                if x in self.mw and self.mw[x][1] != did: req(self.mw[x][0], 10)
                if x in self.vw: req(self.vw[x], 2)
        elif k in ("valu", "trans", "perm", "rfl"):
            for x in rr:
                if x in self.mw: req(self.mw[x][0], 12)
                if x in self.tw: req(self.tw[x], 1)
                if x in self.sw: req(self.sw[x], 2)
                if k == "perm" and x in self.vw: req(self.vw[x], 2)
                if k == "rfl" and x in self.vw: req(self.vw[x], 1)
            for x in ww:
                if x in self.mw: req(self.mw[x][0], 12)
                if x in self.mc: req(self.mc[x], 7)
                if x in self.stw: req(self.stw[x], 2)
                if k == "perm" and x in self.vw: req(self.vw[x], 2)
        elif k in ("ldsr", "ldsw", "vmem", "vstore", "dma"):
            for x in rr + ww:
                if x in self.mw: req(self.mw[x][0], 12)
                if x in self.sw: req(self.sw[x], 5)
                if x in self.tw: req(self.tw[x], 1)
            for x in ww:
                if x in self.mc: req(self.mc[x], 7)
                if x in self.stw: req(self.stw[x], 2)
            if k == "dma": req(self.m0w, 1)
        elif k == "salu":
            for x in rr:
                if x in self.sw: req(self.sw[x], 2)
        if need > 0:
            self.nop(need)
        p = self.pos
        self._put(text)
        if k == "mfma":
            did = str(w[0])
            for x in ww:
                self.mw[x] = (p, did)
                self.vw.pop(x, None)
            for x in cc:
                self.mc[x] = p
        elif k in ("valu", "trans", "perm", "rfl"):
            for x in ww:
                if x[0] in "va" and x != "vcc":
                    self.vw[x] = p
                    self.mw.pop(x, None)
                    if k == "trans":
                        self.tw[x] = p
                    else:
                        self.tw.pop(x, None)
                else:
                    self.sw[x] = p
        elif k == "ldsr":
            self.lds.append(frozenset(ww))
            for x in ww:
                self.vw.pop(x, None); self.mw.pop(x, None); self.tw.pop(x, None)
        elif k == "ldsw":
            self.lds.append(frozenset())
        elif k == "vstore":
            for x in rr:
                self.stw[x] = p
        elif k == "salu":
            for x in ww:
                if x == "m0": self.m0w = p
                self.sw.pop(x, None)

    def salu(self, text, r=(), w=()):
        self.I(text, r, w, "salu")

    def valu(self, op, d, *srcs, k="valu", extra=""):
        txt = f"{op} {d}, " + ", ".join(str(x) for x in srcs) + extra
        rd = []
        for x in srcs:
            if isinstance(x, Reg):
                rd.append(x)
            elif isinstance(x, Neg):
                rd.append(x.r)
        self.I(txt, rd, [d], k)

    def mfma(self, d, A, B, c):
        ctext = str(c) if c is not None else "0"
        self.I(f"v_mfma_f32_32x32x16_bf16 {d}, {A}, {B}, {ctext}", [A, B], [d], "mfma", c=c)

    def ds_read_b128(self, d, addr, off):
        assert 0 <= off < 65536, off
        self.I(f"ds_read_b128 {d}, {addr} offset:{off}", [addr], [d], "ldsr")

    def ds_read_tr(self, d, addr, off):
        assert 0 <= off < 65536, off
        self.I(f"ds_read_b64_tr_b16 {d}, {addr} offset:{off}", [addr], [d], "ldsr")

    def text(self):
        return "\n".join(self.lines) + "\n"


class Neg:
    def __init__(self, r):
        self.r = r

    def __str__(self):
        return "-" + str(self.r)
```

```python
import sys, math, struct, argparse
from emit import Em, Reg, Neg, v, a, s

NAME = "concat_heads__gqa_block_cached__mha_block_cached__near_ridge"
LDS_BYTES = 163840

SRD_K, SRD_V, SRD_WQ, SRD_X, SRD_WO, SRD_WS = (s(4, 4), s(8, 4), s(12, 4), s(16, 4), s(20, 4), s(24, 4))
S_WAVE, S_ROLE, S_U, S_C = s(28), s(29), s(30), s(31)
S_U6144, S_U4096 = s(32), s(33)
S_T = [s(34 + i) for i in range(8)]
S_FLAG = s(42)
S_THR = s(43)
S_EXEC = s(44, 2)
S_ST = s(46)
S_RET = s(48, 2)
S_PTR = 64

V_TID = v(0)
P_K, P_V, P_WQ, P_X, P_WO = v(1), v(2), v(3), v(4), v(5)
V_D = [v(6 + i) for i in range(6)]
V_DWO = v(12)
AD = [v(13 + i) for i in range(4)]
XA = [v(17), v(18)]
V_MC, V_L, V_ALPHA = v(19), v(20), v(21)
V_T = [v(22 + i) for i in range(10)]
V_ST = v(32)
V_RINV = v(33)
FR = [v(40 + 4 * i, 4) for i in range(6)]
SP = [v(64, 16), v(80, 16)]
OPACC = [v(96 + 16 * i, 16) for i in range(4)]
XF = [v(96, 4), v(100, 4)]
OACC = [v(160 + 16 * i, 16) for i in range(6)]
QF = [a(0, 48), a(48, 48)]
QPACC = [a(96 + 16 * i, 16) for i in range(6)]
STASH = [a(96 + 32 * i, 32) for i in range(5)]

SCALE = (192 ** -0.5) * math.log2(math.e)
THRESH = 8.0


def f2u(x):
    return struct.unpack("<I", struct.pack("<f", x))[0]


class Load:
    def __init__(self, kind, role, size, **kw):
        self.kind, self.role, self.size = kind, role, size
        self.kw = kw
        self.addr = None
        self.issued_seq = None
        self.consumer = None


class Stage:
    def __init__(self, kind, load, **kw):
        self.kind, self.load, self.kw = kind, load, kw
        self.pre = []
        self.post = []
        load.consumer = self


class Gen:
    def __init__(self, opt):
        self.e = Em()
        self.opt = opt
        self.jobs = []
        self.nm = 0
        self.free = [(0, LDS_BYTES)]
        self.role_cnt = [0, 0]
        self.streams = {0: [], 1: []}
        self.next_load = {0: 0, 1: 0}
        self.gates = set()
        self.exposed = 0
        self.nt = " nt" if opt.nt else ""
        self.wnt = " nt" if opt.wnt else ""
        self.snt = " nt" if opt.snt else ""

    def alloc(self, size, top):
        rng = reversed(range(len(self.free))) if top else range(len(self.free))
        for i in rng:
            lo, hi = self.free[i]
            if hi - lo >= size:
                if top:
                    addr = hi - size
                    self.free[i] = (lo, addr)
                else:
                    addr = lo
                    self.free[i] = (lo + size, hi)
                self.free = [x for x in self.free if x[1] > x[0]]
                return addr
        return None

    def release(self, addr, size):
        self.free.append((addr, addr + size))
        self.free.sort()
        out = []
        for lo, hi in self.free:
            if out and out[-1][1] == lo:
                out[-1] = (out[-1][0], hi)
            else:
                assert not out or out[-1][1] <= lo
                out.append((lo, hi))
        self.free = out

    def dma(self, voff, srd, soff, ioff, nt):
        self.e.I(f"buffer_load_dwordx4 {voff}, {srd}, {soff} offen offset:{ioff}{nt} lds",
                 [voff, srd, soff, "m0"], [], "dma")

    def issue(self, L):
        e = self.e
        A = L.addr
        if L.kind in ("K", "V", "WQ"):
            srd = {"K": SRD_K, "V": SRD_V, "WQ": SRD_WQ}[L.kind]
            D = V_D[0:3] if L.kind in ("K", "WQ") else V_D[3:6]
            pitch = 12288 if L.kind == "WQ" else 384
            g = L.kw["goff"]
            nt = self.wnt if L.kind == "WQ" else self.nt
            e.salu(f"s_add_u32 m0, {S_U6144}, {A}", [S_U6144], ["m0"])
            e.salu(f"s_mov_b32 {S_T[0]}, {g}", [], [S_T[0]])
            e.salu(f"s_mov_b32 {S_T[1]}, {g + 8 * pitch}", [], [S_T[1]])
            for p in range(3):
                self.dma(D[p], srd, S_T[0], p * 1024, nt)
            e.salu(f"s_add_u32 m0, {S_U6144}, {A + 3072}", [S_U6144], ["m0"])
            for p in range(3):
                self.dma(D[p], srd, S_T[1], p * 1024, nt)
            n = 6
            if L.kind == "WQ":
                xg = L.kw["xoff"]
                e.salu(f"s_add_u32 m0, {S_U4096}, {A + 12288}", [S_U4096], ["m0"])
                for p in range(4):
                    e.salu(f"s_mov_b32 {S_T[2 + p]}, {xg + p * (20480 - 1024)}", [], [S_T[2 + p]])
                for p in range(4):
                    self.dma(V_D[3], SRD_X, S_T[2 + p], p * 1024, self.wnt)
                n = 10
        elif L.kind == "WO":
            g = L.kw["goff"]
            e.salu(f"s_add_u32 m0, {S_U6144}, {A}", [S_U6144], ["m0"])
            for p in range(6):
                e.salu(f"s_mov_b32 {S_T[p]}, {g + p * 5120 - (p % 4) * 1024}", [], [S_T[p]])
            for p in range(4):
                self.dma(V_DWO, SRD_WO, S_T[p], p * 1024, self.wnt)
            e.salu(f"s_add_u32 m0, {S_U6144}, {A + 4096}", [S_U6144], ["m0"])
            for p in range(4, 6):
                self.dma(V_DWO, SRD_WO, S_T[p], (p % 4) * 1024, self.wnt)
            n = 6
        self.role_cnt[L.role] += n
        L.issued_seq = self.role_cnt[L.role]

    def pick_loads(self, caps):
        out = {0: [], 1: []}
        progress = True
        while progress:
            progress = False
            for role in (0, 1):
                st = self.streams[role]
                i = self.next_load[role]
                if i >= len(st):
                    continue
                live = sum(1 for L in st[:i] if L.addr is not None and not L.kw.get("freed"))
                if live >= caps[role]:
                    continue
                L = st[i]
                addr = self.alloc(L.size, top=(role == 1))
                if addr is None:
                    continue
                L.addr = addr
                out[role].append(L)
                self.next_load[role] += 1
                progress = True
        return out

    def sync(self, need, freed, caps):
        e = self.e
        if freed is not None:
            self.release(freed.addr, freed.size)
            freed.kw["freed"] = True
        if need is not None:
            assert need.issued_seq is not None, ("load not issued in time", need.kind, need.kw)
        waits = {0: None, 1: None}
        if need is not None:
            waits[need.role] = min(63, self.role_cnt[need.role] - need.issued_seq)
        todo = self.pick_loads(caps)
        lw, ld = e.newlabel("Lw"), e.newlabel("Ld")
        e.salu(f"s_cmp_eq_u32 {S_ROLE}, 0", [S_ROLE], ["scc"])
        e.salu(f"s_cbranch_scc1 {lw}")
        save_pos = e.pos
        for role, lab in ((1, None), (0, lw)):
            if lab:
                e.label(lab)
            if waits[role] is not None:
                e.salu(f"s_waitcnt vmcnt({waits[role]})")
            e.salu("s_barrier")
            for L in todo[role]:
                self.issue(L)
            if role == 1:
                e.salu(f"s_branch {ld}")
        e.label(ld)
        e.pos = save_pos + 1
        e.m0w = e.pos

    def initial_issue(self, caps):
        e = self.e
        todo = self.pick_loads(caps)
        lw, ld = e.newlabel("Lw"), e.newlabel("Ld")
        e.salu(f"s_cmp_eq_u32 {S_ROLE}, 0", [S_ROLE], ["scc"])
        e.salu(f"s_cbranch_scc1 {lw}")
        for role, lab in ((1, None), (0, lw)):
            if lab:
                e.label(lab)
            for L in todo[role]:
                self.issue(L)
            if role == 1:
                e.salu(f"s_branch {ld}")
        e.label(ld)
        e.fence()

    def setup_addr(self, st):
        e = self.e
        A = st.load.addr
        k = st.kind
        if k == "K":
            e.valu("v_add_u32", AD[0], A, P_K)
            for j in range(1, 4):
                e.valu("v_xor_b32", AD[j], j << 5, AD[0])
        elif k == "V":
            e.valu("v_add_u32", AD[0], A, P_V)
            e.valu("v_xor_b32", AD[1], 64, AD[0])
        elif k == "QP":
            e.valu("v_add_u32", AD[0], A, P_WQ)
            e.valu("v_xor_b32", AD[1], 64, AD[0])
            e.valu("v_add_u32", XA[0], A + 12288, P_X)
            e.valu("v_xor_b32", XA[1], 32, XA[0])
        elif k == "OP":
            e.valu("v_add_u32", AD[0], A, P_WO)
            for j in range(1, 4):
                e.valu("v_xor_b32", AD[j], j << 6, AD[0])

    def read_frag(self, st, m):
        e = self.e
        F = FR[m % 6]
        k = st.kind
        if k == "K":
            e.ds_read_b128(F, AD[m & 3], (m >> 2) * 128)
        elif k == "V":
            ks2, Tt = m // 6, m % 6
            for ee in range(2):
                e.ds_read_tr(F.sub(2 * ee, 2), AD[Tt & 1], (16 * ks2 + 8 * ee) * 384 + (Tt >> 1) * 128)
        elif k == "QP":
            ks2, Tt = m // 6, m % 6
            if m == 0:
                e.ds_read_b128(XF[0], XA[0], 0)
            if m == 6:
                e.ds_read_b128(XF[1], XA[1], 0)
            for ee in range(2):
                e.ds_read_tr(F.sub(2 * ee, 2), AD[Tt & 1], (16 * ks2 + 4 * ee) * 384 + (Tt >> 1) * 128)
        elif k == "OP":
            ks, Tt = m // 4, m % 4
            for ee in range(2):
                e.ds_read_tr(F.sub(2 * ee, 2), AD[Tt], ks * 4096 + ee * 1024)

    def do_mfma(self, st, m):
        e = self.e
        F = FR[m % 6]
        k = st.kind
        if k == "K":
            S = SP[st.kw["buf"]]
            e.mfma(S, F, QF[st.kw["head"]].sub(4 * m, 4), S if m else None)
        elif k == "V":
            ks2, Tt = m // 6, m % 6
            Pf = SP[st.kw["buf"]].sub(8 * ks2, 4)
            first = st.kw["first"] and ks2 == 0
            e.mfma(OACC[Tt], F, Pf, None if first else OACC[Tt])
        elif k == "QP":
            ks2, Tt = m // 6, m % 6
            acc = st.kw["acc"][Tt]
            first = st.kw["first"] and ks2 == 0
            e.mfma(acc, F, XF[ks2], None if first else acc)
        elif k == "OP":
            ks, Tt = m // 4, m % 4
            acc = st.kw["acc"][Tt]
            first = st.kw["first"] and ks == 0
            B = QF[st.kw["head"]].sub(4 * (3 * st.kw["j"] + ks), 4)
            e.mfma(acc, F, B, None if first else acc)
        self.nm += 1

    def add_job(self, fn, cost=4, delay=0, gate=None, tag=None):
        self.jobs.append((self.nm + delay, cost, fn, gate, tag))

    def fill(self, budget):
        while self.jobs and budget > 0:
            av, cost, fn, gate, tag = self.jobs[0]
            if av > self.nm:
                break
            if gate is not None and gate not in self.gates:
                break
            self.jobs.pop(0)
            fn()
            budget -= cost

    def flush_jobs(self):
        while self.jobs:
            _, _, fn, gate, _ = self.jobs.pop(0)
            assert gate is None or gate in self.gates, gate
            fn()

    def flush_tag(self, tag):
        idx = -1
        for i, j in enumerate(self.jobs):
            if j[4] == tag:
                idx = i
        n = 0
        for _ in range(idx + 1):
            _, _, fn, gate, _ = self.jobs.pop(0)
            assert gate is None or gate in self.gates, (gate, tag)
            fn()
            n += 1
        if n:
            self.e.comment(f"flushed {n} jobs for {tag}")
            self.exposed += n

    def run_stages(self, stages, caps_fn):
        e = self.e
        first = stages[0]
        self.sync(first.load, None, caps_fn(0))
        self.setup_addr(first)
        for m in range(6):
            self.read_frag(first, m)
        prev = None
        for si, st in enumerate(stages):
            nxt = stages[si + 1] if si + 1 < len(stages) else None
            for fn in st.pre:
                fn()
            for m in range(12):
                self.do_mfma(st, m)
                rd = 0
                if m < 6:
                    self.read_frag(st, m + 6)
                    rd = 1 if st.kind == "K" else 2
                elif nxt is not None:
                    self.read_frag(nxt, m - 6)
                    rd = 1 if nxt.kind == "K" else 2
                if m == 5:
                    self.sync(nxt.load if nxt else None, prev.load if prev else None, caps_fn(si + 1))
                    if nxt is not None:
                        self.setup_addr(nxt)
                else:
                    self.fill(self.opt.budget - 4 * rd)
            for fn in st.post:
                fn()
            prev = st
        self.last_stage = prev

    def softmax_jobs(self, buf, first, tag, gate):
        e = self.e
        S = SP[buf]
        t0, t1, t2 = V_T[0], V_T[1], V_T[2]

        def J(fn, **kw):
            self.add_job(fn, tag=tag, **kw)
        d = 2
        J(lambda: e.valu("v_max3_f32", t0, S[0], S[1], S[2]), delay=d)
        J(lambda: e.valu("v_max3_f32", t1, S[3], S[4], S[5]))
        J(lambda: e.valu("v_max3_f32", t0, t0, S[6], S[7]))
        J(lambda: e.valu("v_max3_f32", t1, t1, S[8], S[9]))
        J(lambda: e.valu("v_max3_f32", t0, t0, S[10], S[11]))
        J(lambda: e.valu("v_max3_f32", t1, t1, S[12], S[13]))
        J(lambda: e.valu("v_max3_f32", t0, t0, S[14], S[15]))
        J(lambda: e.valu("v_max_f32", t0, t0, t1))
        J(lambda: e.valu("v_mov_b32", t1, t0))

        def swap():
            e.I(f"v_permlane32_swap_b32 {t0}, {t1}", [t0, t1], [t0, t1], "perm")
        J(swap)
        J(lambda: e.valu("v_max_f32", t0, t0, t1))
        J(lambda: e.valu("v_mul_f32", t0, S_C, t0))
        if first:
            J(lambda: e.valu("v_mov_b32", V_MC, t0))
            J(lambda: e.valu("v_mov_b32", V_L, 0))
        else:
            def decide():
                e.valu("v_add_f32", t1, S_THR, V_MC)
                e.I(f"v_cmp_gt_f32 vcc, {t0}, {t1}", [t0, t1], ["vcc"], "valu")
                lr, lb = e.newlabel("Lrare"), e.newlabel("Lback")
                e.salu(f"s_cbranch_vccnz {lr}", ["vcc"])
                e.label(lb)
                self.rare.append((lr, lb))
            J(decide, cost=12, gate=gate)
        for i in range(16):
            J(lambda i=i: e.valu("v_fma_f32", S[i], S[i], S_C, Neg(V_MC)))
            if i >= 1:
                J(lambda i=i: e.valu("v_exp_f32", S[i - 1], S[i - 1], k="trans"), cost=8)
            if i >= 3:
                J(lambda i=i: e.valu("v_add_f32", V_L, V_L, S[i - 3]))
        J(lambda: e.valu("v_exp_f32", S[15], S[15], k="trans"), cost=8)
        for i in (13, 14):
            J(lambda i=i: e.valu("v_add_f32", V_L, V_L, S[i]))
        for jj in range(4):
            J(lambda jj=jj: e.valu("v_cvt_pk_bf16_f32", S[jj], S[2 * jj], S[2 * jj + 1]))
        J(lambda: e.valu("v_add_f32", V_L, V_L, S[15]))
        for jj in range(4):
            J(lambda jj=jj: e.valu("v_cvt_pk_bf16_f32", S[8 + jj], S[8 + 2 * jj], S[8 + 2 * jj + 1]))

    def emit_rare_blocks(self):
        e = self.e
        t0, t1 = V_T[0], V_T[1]
        for lr, lb in self.rare:
            e.label(lr)
            e.salu(f"s_call_b64 {S_RET}, L_rareA")
            e.salu(f"s_branch {lb}")
        for lr, lb in self.rareB:
            e.label(lr)
            e.salu(f"s_call_b64 {S_RET}, L_rareB")
            e.salu(f"s_branch {lb}")
        if self.rare:
            e.label("L_rareA")
            e.nop(4)
            e.valu("v_max_f32", t1, t0, V_MC)
            e.valu("v_sub_f32", V_T[3], V_MC, t1)
            e.valu("v_exp_f32", V_T[3], V_T[3], k="trans")
            e.valu("v_mov_b32", V_MC, t1)
            e.valu("v_mul_f32", V_L, V_L, V_T[3])
            e.valu("v_mul_f32", V_ALPHA, V_ALPHA, V_T[3])
            e.salu(f"s_mov_b32 {S_FLAG}, 1", [], [S_FLAG])
            e.nop(4)
            e.salu(f"s_setpc_b64 {S_RET}")
        if self.rareB:
            e.label("L_rareB")
            e.nop(16)
            for Tt in range(6):
                for i in range(16):
                    e.valu("v_mul_f32", OACC[Tt][i], OACC[Tt][i], V_ALPHA)
            e.valu("v_mov_b32", V_ALPHA, 1.0)
            e.salu(f"s_mov_b32 {S_FLAG}, 0", [], [S_FLAG])
            e.nop(4)
            e.salu(f"s_setpc_b64 {S_RET}")

    def rescale_check(self):
        e = self.e
        lr, lb = e.newlabel("LrB"), e.newlabel("LbB")
        e.salu(f"s_cmp_lg_u32 {S_FLAG}, 0", [S_FLAG], ["scc"])
        e.salu(f"s_cbranch_scc1 {lr}")
        e.label(lb)
        self.rareB.append((lr, lb))

    def fin_q(self, acc, head, as_jobs=False, tag=None):
        e = self.e
        ops = []
        k = 0
        for Tt in range(6):
            for a1 in range(2):
                for jj in range(4):
                    src0, src1 = acc[Tt][8 * a1 + 2 * jj], acc[Tt][8 * a1 + 2 * jj + 1]
                    dst = QF[head][4 * (2 * Tt + a1) + jj]
                    ta, tb, tc = V_T[4 + (k % 2) * 3], V_T[5 + (k % 2) * 3], V_T[6 + (k % 2) * 3]
                    k += 1
                    if acc[Tt].f == "a":
                        ops.append(lambda ta=ta, src0=src0: e.valu("v_accvgpr_read_b32", ta, src0))
                        ops.append(lambda tb=tb, src1=src1: e.valu("v_accvgpr_read_b32", tb, src1))
                        ops.append(lambda ta=ta, tb=tb, tc=tc: e.valu("v_cvt_pk_bf16_f32", tc, ta, tb))
                    else:
                        ops.append(lambda tc=tc, src0=src0, src1=src1: e.valu("v_cvt_pk_bf16_f32", tc, src0, src1))
                    ops.append(lambda tc=tc, dst=dst: e.valu("v_accvgpr_write_b32", dst, tc))
        for i, f in enumerate(ops):
            if as_jobs:
                self.add_job(f, delay=2 if i == 0 else 0, tag=tag)
            else:
                f()

    def fin_o(self, head, as_jobs=False, tag=None):
        e = self.e
        t0, t1 = V_RINV, V_T[1]
        ops = []
        ops.append(lambda: e.valu("v_mov_b32", t0, V_L))
        ops.append(lambda: e.valu("v_mov_b32", t1, V_L))
        ops.append(lambda: e.I(f"v_permlane32_swap_b32 {t0}, {t1}", [t0, t1], [t0, t1], "perm"))
        ops.append(lambda: e.valu("v_add_f32", t0, t0, t1))
        ops.append(lambda: e.valu("v_rcp_f32", t0, t0, k="trans"))
        k = 0
        for Tt in range(6):
            for a1 in range(2):
                for jj in range(4):
                    s0, s1 = OACC[Tt][8 * a1 + 2 * jj], OACC[Tt][8 * a1 + 2 * jj + 1]
                    tc = V_T[4 + (k % 4)]
                    k += 1
                    dst = QF[head][4 * (2 * Tt + a1) + jj]
                    ops.append(lambda s0=s0: e.valu("v_mul_f32", s0, s0, t0))
                    ops.append(lambda s1=s1: e.valu("v_mul_f32", s1, s1, t0))
                    ops.append(lambda tc=tc, s0=s0, s1=s1: e.valu("v_cvt_pk_bf16_f32", tc, s0, s1))
                    ops.append(lambda tc=tc, dst=dst: e.valu("v_accvgpr_write_b32", dst, tc))
        for i, f in enumerate(ops):
            if as_jobs:
                self.add_job(f, delay=2 if i == 5 else 0, tag=tag)
            else:
                f()

    def stash_jobs(self, acc, c, tag):
        e = self.e
        k = 0
        first = True
        for Tt in range(4):
            for a1 in range(2):
                for jj in range(4):
                    s0, s1 = acc[Tt][8 * a1 + 2 * jj], acc[Tt][8 * a1 + 2 * jj + 1]
                    tc = V_T[4 + (k % 4)]
                    k += 1
                    dst = STASH[c][8 * Tt + 4 * a1 + jj]
                    self.add_job(lambda tc=tc, s0=s0, s1=s1: e.valu("v_cvt_pk_bf16_f32", tc, s0, s1),
                                 delay=2 if first else 0, tag=tag)
                    first = False
                    self.add_job(lambda tc=tc, dst=dst: e.valu("v_accvgpr_write_b32", dst, tc), tag=tag)

    def out_jobs(self, acc, c, tag, use_stash=True):
        e = self.e
        k = 0
        first = True
        for Tt in range(4):
            for a1 in range(2):
                for jj in range(4):
                    s0, s1 = acc[Tt][8 * a1 + 2 * jj], acc[Tt][8 * a1 + 2 * jj + 1]
                    ta, tb = V_T[4 + 2 * (k % 3)], V_T[5 + 2 * (k % 3)]
                    k += 1
                    src = STASH[c][8 * Tt + 4 * a1 + jj]
                    if use_stash:
                        self.add_job(lambda ta=ta, src=src: e.valu("v_accvgpr_read_b32", ta, src), tag=tag)
                        self.add_job(lambda ta=ta, tb=tb: e.valu("v_and_b32", tb, 0xffff0000, ta), tag=tag)
                        self.add_job(lambda ta=ta: e.valu("v_lshlrev_b32", ta, 16, ta), tag=tag)
                        self.add_job(lambda ta=ta, s0=s0: e.valu("v_add_f32", s0, s0, ta), delay=2 if first else 0, tag=tag)
                        self.add_job(lambda tb=tb, s1=s1: e.valu("v_add_f32", s1, s1, tb), tag=tag)
                        first = False
                    d = acc[Tt][8 * a1 + jj]
                    self.add_job(lambda d=d, s0=s0, s1=s1: e.valu("v_cvt_pk_bf16_f32", d, s0, s1), delay=2 if first else 0, tag=tag)
                    first = False

                def st(Tt=Tt, a1=a1):
                    off = (c * 8 + Tt * 2 + a1) * 1024
                    data = acc[Tt].sub(8 * a1, 4)
                    e.salu(f"s_mov_b32 {S_ST}, {off}", [], [S_ST])
                    e.I(f"buffer_store_dwordx4 {data}, {V_ST}, {SRD_WS}, {S_ST} offen{self.snt}", [data, V_ST], [], "vstore")
                    self.role_cnt[0] += 1
                    self.role_cnt[1] += 1
                self.add_job(st, cost=8, tag=tag)

    def dump(self, regs):
        e = self.e
        e.wait_lds_all()
        e.fence()
        n = len(regs)
        e.valu("v_and_b32", V_T[0], 63, V_TID)
        e.valu("v_lshlrev_b32", V_T[0], 2, V_T[0])
        e.salu(f"s_lshl_b32 {S_T[0]}, s2, 2", [], [S_T[0]])
        e.salu(f"s_add_u32 {S_T[0]}, {S_T[0]}, {S_WAVE}", [], [S_T[0]])
        e.salu(f"s_mul_i32 {S_T[0]}, {S_T[0]}, {n * 256}", [], [S_T[0]])
        for i, r in enumerate(regs):
            e.I(f"buffer_store_dword {r}, {V_T[0]}, {SRD_WS}, {S_T[0]} offen", [r, V_T[0]], [], "vstore")
            e.salu(f"s_add_u32 {S_T[0]}, {S_T[0]}, 256", [], [S_T[0]])
        e.salu("s_waitcnt vmcnt(0)")
        e.salu("s_endpgm")

    def prologue(self):
        e = self.e
        P = S_PTR
        e.salu("s_cmp_ge_u32 s2, 256")
        e.salu("s_cbranch_scc1 L_end")
        e.salu(f"s_load_dwordx16 s[{P}:{P + 15}], s[0:1], 0")
        e.salu(f"s_load_dwordx4 s[{P + 16}:{P + 19}], s[0:1], 64")
        e.salu(f"s_load_dwordx2 s[{P + 20}:{P + 21}], s[0:1], 96")
        t = S_T
        e.salu(f"s_and_b32 {t[0]}, s2, 7")
        e.salu(f"s_lshr_b32 {t[1]}, s2, 3")
        e.salu(f"s_lshr_b32 {t[2]}, {t[0]}, 2")
        e.salu(f"s_and_b32 {t[3]}, {t[0]}, 3")
        e.salu(f"s_lshl_b32 {t[3]}, {t[3]}, 2")
        e.salu(f"s_and_b32 {t[4]}, {t[1]}, 3")
        e.salu(f"s_add_u32 {t[3]}, {t[3]}, {t[4]}")
        e.salu(f"s_lshr_b32 {t[4]}, {t[1]}, 2")
        L, T0, T1, T2, T3, T4 = V_T[0], V_T[1], V_T[2], V_T[3], V_T[4], V_T[5]
        e.valu("v_lshrrev_b32", T0, 6, V_TID)
        e.valu("v_and_b32", L, 63, V_TID)
        e.I(f"v_readfirstlane_b32 {S_WAVE}, {T0}", [T0], [S_WAVE], "rfl")
        e.salu(f"s_lshr_b32 {S_ROLE}, {S_WAVE}, 1", [S_WAVE], [S_ROLE])
        e.salu(f"s_and_b32 {S_U}, {S_WAVE}, 1", [S_WAVE], [S_U])
        e.salu(f"s_mul_i32 {S_U6144}, {S_U}, 6144")
        e.salu(f"s_lshl_b32 {S_U4096}, {S_U}, 12")
        e.salu(f"s_mov_b32 {S_C}, {f2u(SCALE):#x}")
        e.salu(f"s_mov_b32 {S_THR}, {f2u(THRESH):#x}")
        e.salu(f"s_mov_b32 {S_FLAG}, 0")
        e.salu("s_waitcnt lgkmcnt(0)")
        e.salu(f"s_cmp_eq_u32 {t[2]}, 0")
        for srd, off in ((SRD_X, 0), (SRD_K, 2), (SRD_V, 4), (SRD_WQ, 6), (SRD_WO, 8)):
            e.salu(f"s_cselect_b32 {srd[0]}, s{P + off}, s{P + off + 10}")
            e.salu(f"s_cselect_b32 {srd[1]}, s{P + off + 1}, s{P + off + 11}")
        e.salu(f"s_lshl_b32 {t[5]}, {t[4]}, 4")
        e.salu(f"s_add_u32 {t[5]}, {t[5]}, {t[3]}")
        e.salu(f"s_mul_i32 {t[6]}, {t[5]}, 393216")
        for srd in (SRD_K, SRD_V):
            e.salu(f"s_add_u32 {srd[0]}, {srd[0]}, {t[6]}")
            e.salu(f"s_addc_u32 {srd[1]}, {srd[1]}, 0")
            e.salu(f"s_mov_b32 {srd[2]}, 393216")
            e.salu(f"s_mov_b32 {srd[3]}, 0x20000")
        e.salu(f"s_mul_i32 {t[6]}, {t[3]}, 768")
        e.salu(f"s_add_u32 {SRD_WQ[0]}, {SRD_WQ[0]}, {t[6]}")
        e.salu(f"s_addc_u32 {SRD_WQ[1]}, {SRD_WQ[1]}, 0")
        e.salu(f"s_sub_u32 {SRD_WQ[2]}, 7864320, {t[6]}")
        e.salu(f"s_mov_b32 {SRD_WQ[3]}, 0x20000")
        e.salu(f"s_mul_i32 {t[6]}, {t[4]}, 143360")
        e.salu(f"s_add_u32 {SRD_X[0]}, {SRD_X[0]}, {t[6]}")
        e.salu(f"s_addc_u32 {SRD_X[1]}, {SRD_X[1]}, 0")
        e.salu(f"s_sub_u32 {SRD_X[2]}, 1146880, {t[6]}")
        e.salu(f"s_mov_b32 {SRD_X[3]}, 0x20000")
        e.salu(f"s_mul_i32 {t[6]}, {t[3]}, 491520")
        e.salu(f"s_add_u32 {SRD_WO[0]}, {SRD_WO[0]}, {t[6]}")
        e.salu(f"s_addc_u32 {SRD_WO[1]}, {SRD_WO[1]}, 0")
        e.salu(f"s_mov_b32 {SRD_WO[2]}, 491520")
        e.salu(f"s_mov_b32 {SRD_WO[3]}, 0x20000")
        e.salu(f"s_mov_b32 {SRD_WS[0]}, s{P + 20}")
        e.salu(f"s_mov_b32 {SRD_WS[1]}, s{P + 21}")
        if self.opt.dump:
            e.salu(f"s_mov_b32 {SRD_WS[2]}, 268435456")
        else:
            e.salu(f"s_lshl_b32 {t[6]}, {t[2]}, 7")
            e.salu(f"s_add_u32 {t[6]}, {t[6]}, {t[5]}")
            e.salu(f"s_mul_i32 {t[6]}, {t[6]}, {PART_BYTES}")
            e.salu(f"s_add_u32 {SRD_WS[0]}, {SRD_WS[0]}, {t[6]}")
            e.salu(f"s_addc_u32 {SRD_WS[1]}, {SRD_WS[1]}, 0")
            e.salu(f"s_mov_b32 {SRD_WS[2]}, {PART_BYTES}")
        e.salu(f"s_mov_b32 {SRD_WS[3]}, 0x20000")
        lkv, ldone = e.newlabel("Lkv"), e.newlabel("Lpd")
        IDX, RR, POS = V_T[6], V_T[7], V_T[8]

        def idx_rp(p):
            e.valu("v_add_u32", IDX, 64 * p, L)
            e.valu("v_mul_u32_u24", RR, 2731, IDX)
            e.valu("v_lshrrev_b32", RR, 16, RR)
            e.valu("v_mul_u32_u24", T0, 24, RR)
            e.valu("v_sub_u32", POS, IDX, T0)

        def vsw():
            e.valu("v_bfe_u32", T1, RR, 1, 1)
            e.valu("v_lshlrev_b32", T1, 2, T1)
            e.valu("v_xor_b32", T1, T1, POS)
            e.valu("v_lshlrev_b32", T1, 4, T1)

        e.valu("v_lshrrev_b32", T0, 4, L)
        e.valu("v_lshlrev_b32", T1, 2, T0)
        e.valu("v_and_b32", T2, 15, L)
        e.valu("v_xor_b32", T1, T1, T2)
        e.valu("v_lshlrev_b32", T1, 4, T1)
        e.valu("v_mul_u32_u24", T0, 1280, T0)
        e.salu(f"s_mul_i32 {t[0]}, {S_U}, 30720")
        e.valu("v_add3_u32", V_DWO, T0, T1, t[0])
        e.salu(f"s_cmp_eq_u32 {S_ROLE}, 1")
        e.salu(f"s_cbranch_scc1 {lkv}")
        e.salu(f"s_mul_i32 {t[0]}, {S_U}, 196608")
        for p in range(3):
            idx_rp(p)
            vsw()
            e.valu("v_mul_u32_u24", T0, 12288, RR)
            e.valu("v_add3_u32", V_D[p], T0, T1, t[0])
            if p:
                e.valu("v_subrev_u32", V_D[p], 1024 * p, V_D[p])
        e.valu("v_lshrrev_b32", T0, 2, L)
        e.valu("v_mul_u32_u24", T0, 1280, T0)
        e.valu("v_bfe_u32", T1, L, 4, 2)
        e.valu("v_and_b32", T2, 3, L)
        e.valu("v_xor_b32", T1, T1, T2)
        e.valu("v_lshlrev_b32", T1, 4, T1)
        e.salu(f"s_mul_i32 {t[0]}, {S_U}, 81920")
        e.valu("v_add3_u32", V_D[3], T0, T1, t[0])
        e.valu("v_mov_b32", V_D[4], 0)
        e.valu("v_mov_b32", V_D[5], 0)
        e.salu(f"s_branch {ldone}")
        e.label(lkv)
        e.salu(f"s_lshl_b32 {t[0]}, {S_U}, 2")
        for p in range(3):
            idx_rp(p)
            e.valu("v_mul_u32_u24", T3, 384, RR)
            e.valu("v_add_u32", T3, S_U6144, T3)
            if p:
                e.valu("v_subrev_u32", T3, 1024 * p, T3)
            e.valu("v_bfe_u32", T1, RR, 1, 2)
            e.valu("v_or_b32", T1, t[0], T1)
            e.valu("v_xor_b32", T1, T1, POS)
            e.valu("v_lshlrev_b32", T1, 4, T1)
            e.valu("v_add_u32", V_D[p], T3, T1)
            vsw()
            e.valu("v_add_u32", V_D[3 + p], T3, T1)
        e.label(ldone)
        e.fence()

    def patterns(self):
        e = self.e
        L, T0, T1, T2, T3, T4, HH, RRr = V_T[0], V_T[1], V_T[2], V_T[3], V_T[4], V_T[5], V_T[6], V_T[7]
        e.valu("v_and_b32", L, 63, V_TID)
        e.valu("v_lshrrev_b32", HH, 5, L)
        e.valu("v_bfe_u32", RRr, L, 2, 2)
        e.valu("v_bfe_u32", T0, L, 4, 1)
        e.valu("v_lshlrev_b32", T0, 5, T0)
        e.valu("v_and_b32", T1, 1, L)
        e.valu("v_lshl_or_b32", T0, T1, 4, T0)
        e.valu("v_bfe_u32", T1, L, 1, 1)
        e.valu("v_lshl_or_b32", T0, T1, 3, T0)
        e.valu("v_bfe_u32", T1, L, 3, 1)
        e.valu("v_lshl_or_b32", T2, T1, 6, T0)
        e.valu("v_lshl_add_u32", T3, HH, 2, RRr)
        e.valu("v_mul_u32_u24", T3, 384, T3)
        e.valu("v_add_u32", P_V, T3, T2)
        e.valu("v_lshl_add_u32", T3, HH, 3, RRr)
        e.valu("v_mul_u32_u24", T4, 384, T3)
        e.valu("v_add_u32", P_WQ, T4, T2)
        e.valu("v_lshlrev_b32", T4, 8, T3)
        e.valu("v_lshl_or_b32", T4, RRr, 6, T4)
        e.valu("v_add_u32", P_WO, T4, T0)
        e.valu("v_and_b32", T0, 31, L)
        e.valu("v_bfe_u32", T1, L, 1, 2)
        e.valu("v_bfe_u32", T2, L, 4, 1)
        e.valu("v_lshl_or_b32", T1, T2, 2, T1)
        e.valu("v_xor_b32", T1, T1, HH)
        e.valu("v_mul_u32_u24", T2, 384, T0)
        e.valu("v_lshl_or_b32", P_K, T1, 4, T2)
        e.valu("v_xor_b32", T1, RRr, HH)
        e.valu("v_lshlrev_b32", T2, 6, T0)
        e.valu("v_lshl_or_b32", T2, T1, 4, T2)
        e.salu(f"s_lshl_b32 {S_T[7]}, {S_WAVE}, 11")
        e.valu("v_add_u32", P_X, S_T[7], T2)
        e.valu("v_mov_b32", V_ALPHA, 1.0)
        e.valu("v_lshlrev_b32", T0, 4, L)
        e.salu(f"s_mul_i32 {S_T[7]}, {S_WAVE}, {PART_WAVE}")
        e.valu("v_add_u32", V_ST, S_T[7], T0)
        e.valu("v_and_b32", T0, 31, L)
        e.salu(f"s_lshl_b32 {S_T[7]}, {S_WAVE}, 5")
        e.valu("v_add_u32", T0, S_T[7], T0)
        e.I(f"v_cmp_le_u32 vcc, 112, {T0}", [T0], ["vcc"], "valu")
        e.valu("v_mov_b32", T1, 0x7ff00000)
        e.I(f"v_cndmask_b32 {V_ST}, {V_ST}, {T1}, vcc", [V_ST, T1, "vcc"], [V_ST], "valu")


PART_WAVE = 5 * 8 * 1024
PART_BYTES = 4 * PART_WAVE


def build(opt):
    g = Gen(opt)
    e = g.e
    g.rare, g.rareB = [], []
    W, KV = 0, 1
    stages = []

    def mk(kind, role, size, **kw):
        L = Load(kind, role, size, **kw)
        g.streams[role].append(L)
        return L

    def qp_stage(head, sidx, acc):
        L = mk("WQ", W, 20480, goff=head * 384 + sidx * 32 * 12288, xoff=sidx * 64)
        return Stage("QP", L, acc=acc, first=(sidx == 0))

    def k_stage(head, j):
        L = mk("K", KV, 12288, goff=(head * 16 + j) * 12288)
        return Stage("K", L, head=head, buf=j & 1, j=j)

    def v_stage(head, j):
        L = mk("V", KV, 12288, goff=(head * 16 + j) * 12288)
        return Stage("V", L, head=head, buf=j & 1, j=j, first=(j == 0))

    def op_stage(head, c, j, role, acc, first):
        L = mk("WO", role, 12288, goff=(head * 192 + 48 * j) * 1280 + c * 256)
        return Stage("OP", L, head=head, c=c, j=j, acc=acc, first=first)

    ph1 = [qp_stage(0, i, OACC) for i in range(20)]

    def attn(head, wstages):
        out = []
        wi = iter(wstages)
        for it in range(4):
            b = 4 * it
            tmpl = opt.tmpl
            cnt = {"K": 0, "V": 0}
            for ch in tmpl:
                if ch == "W":
                    out.append(next(wi)())
                    continue
                j = b + cnt[ch]
                cnt[ch] += 1
                if ch == "K":
                    st = k_stage(head, j)
                    st.post.append(lambda j=j: g.softmax_jobs(j & 1, j == 0, ("sm", head, j), ("v", head, j - 1)))
                else:
                    st = v_stage(head, j)
                    st.pre.append(lambda j=j: g.flush_tag(("sm", head, j)))
                    if j > 0:
                        st.pre.append(lambda: g.rescale_check())
                    st.pre.append(lambda j=j: g.gates.add(("v", head, j)))
                out.append(st)
        return out

    def qp1(i):
        st = qp_stage(1, i, QPACC)
        if i == 19:
            st.post.append(lambda: g.fin_q(QPACC, 1, as_jobs=True, tag="finq1"))
        return st

    def op0(i):
        c, j = i // 4, i % 4
        st = op_stage(0, c, j, W, OPACC, j == 0)
        if i == 0:
            st.pre.append(lambda: g.flush_tag("fino0"))
        if j == 0 and c > 0:
            st.pre.append(lambda: g.flush_tag(("stash", c - 1)))
        if j == 3:
            st.post.append(lambda: g.stash_jobs(OPACC, c, ("stash", c)))
        return st

    ph2 = attn(0, [(lambda i=i: qp1(i)) for i in range(20)])
    ph2[0].pre.append(lambda: g.fin_q(OACC, 0))
    lastv = [st for st in ph2 if st.kind == "V"][-1]
    lastv.post.append(lambda: g.fin_o(0, as_jobs=True, tag="fino0"))
    ph3 = attn(1, [(lambda i=i: op0(i)) for i in range(20)])
    ph3[0].pre.insert(0, lambda: g.flush_tag("finq1"))
    firstv = [st for st in ph3 if st.kind == "V"][0]
    firstv.pre.insert(0, lambda: g.flush_tag("fino0"))
    ACC2 = [OPACC, OACC[0:4]]
    ph4 = []
    for c in range(5):
        for j in range(4):
            st = op_stage(1, c, j, KV, ACC2[c & 1], j == 0)
            if c == 0 and j == 0:
                st.pre.append(lambda: g.flush_jobs())
                st.pre.append(lambda: g.fin_o(1))
            if j == 0 and c >= 2:
                st.pre.append(lambda c=c: g.flush_tag(("out", c - 2)))
            if j == 3:
                st.post.append(lambda c=c: g.out_jobs(ACC2[c & 1], c, ("out", c)))
            ph4.append(st)

    g.prologue()
    if opt.stop == "q0":
        g.initial_issue({0: 5, 1: 0})
        g.patterns()
        g.run_stages(ph1, lambda si: {0: 5, 1: 0})
        g.fin_q(OACC, 0)
        g.dump([QF[0][i] for i in range(48)])
    elif opt.stop == "o0q1":
        g.initial_issue({0: 5, 1: 99})
        g.patterns()
        g.run_stages(ph1 + ph2, lambda si: {0: 5 if si < 16 else 3, 1: 99})
        g.flush_jobs()
        g.dump([QF[0][i] for i in range(48)] + [QF[1][i] for i in range(48)])
    else:
        g.initial_issue({0: opt.wcap0, 1: 99})
        g.patterns()
        g.run_stages(ph1 + ph2 + ph3 + ph4, lambda si: {0: opt.wcap0 if si < 16 else opt.wcap, 1: 99})
        g.flush_jobs()
        e.salu("s_waitcnt vmcnt(0)")
    print("exposed flushed jobs:", g.exposed)
    e.label("L_end")
    e.salu("s_endpgm")
    g.emit_rare_blocks()
    return g


def build_reduce(opt):
    e = Em()
    e.salu("s_cmp_ge_u32 s2, 640")
    e.salu("s_cbranch_scc1 R_end")
    e.salu("s_load_dwordx2 s[4:5], s[0:1], 80")
    e.salu("s_load_dwordx2 s[8:9], s[0:1], 96")
    e.salu("s_mov_b32 s12, 0x6666667")
    e.salu("s_mul_hi_u32 s13, s2, s12")
    e.salu("s_mul_i32 s14, s13, 40")
    e.salu("s_sub_u32 s14, s2, s14")
    e.valu("v_lshrrev_b32", v(1), 6, v(0))
    e.valu("v_and_b32", v(2), 63, v(0))
    e.valu("v_mul_u32_u24", v(3), PART_WAVE, v(1))
    e.valu("v_lshl_add_u32", v(3), v(2), 4, v(3))
    e.salu("s_lshl_b32 s15, s14, 10")
    e.valu("v_add_u32", v(3), s(15), v(3))
    e.valu("v_and_b32", v(4), 31, v(2))
    e.valu("v_lshl_add_u32", v(4), v(1), 5, v(4))
    e.I("v_cmp_le_u32 vcc, 112, v4", [v(4)], ["vcc"], "valu")
    e.valu("v_mov_b32", v(5), 0x7ff00000)
    e.I("v_cndmask_b32 v3, v3, v5, vcc", [v(3), v(5), "vcc"], [v(3)], "valu")
    e.salu("s_and_b32 s16, s13, 7")
    e.salu("s_lshr_b32 s17, s13, 3")
    e.salu("s_mul_i32 s16, s16, 286720")
    e.salu("s_mul_i32 s17, s17, 1280")
    e.salu("s_add_u32 s16, s16, s17")
    e.salu("s_lshl_b32 s17, s14, 5")
    e.salu("s_add_u32 s16, s16, s17")
    e.valu("v_mul_u32_u24", v(6), 2560, v(4))
    e.valu("v_lshrrev_b32", v(7), 5, v(2))
    e.valu("v_lshl_add_u32", v(6), v(7), 4, v(6))
    e.valu("v_add_u32", v(6), s(16), v(6))
    e.I("v_cndmask_b32 v6, v6, v5, vcc", [v(6), v(5), "vcc"], [v(6)], "valu")
    e.salu("s_waitcnt lgkmcnt(0)")
    e.salu("s_mov_b32 s6, 2293760")
    e.salu("s_mov_b32 s7, 0x20000")
    e.salu(f"s_mul_i32 s18, s13, {16 * PART_BYTES}")
    e.salu("s_add_u32 s8, s8, s18")
    e.salu("s_addc_u32 s9, s9, 0")
    e.salu(f"s_mov_b32 s10, {16 * PART_BYTES}")
    e.salu("s_mov_b32 s11, 0x20000")
    rnt = " nt" if opt.rnt else ""
    for hp in range(16):
        e.salu(f"s_mov_b32 s{20 + hp}, {hp * PART_BYTES}")
    for hp in range(16):
        e.I(f"buffer_load_dwordx4 v[{16 + 4 * hp}:{19 + 4 * hp}], v3, s[8:11], s{20 + hp} offen{rnt}", [v(3)], [], "vmem")
    acc = [v(8 + i) for i in range(8)]
    for hp in range(16):
        e.salu(f"s_waitcnt vmcnt({15 - hp})")
        for jj in range(4):
            x = v(16 + 4 * hp + jj)
            if hp == 0:
                e.valu("v_lshlrev_b32", acc[2 * jj], 16, x)
                e.valu("v_and_b32", acc[2 * jj + 1], 0xffff0000, x)
            else:
                e.valu("v_lshlrev_b32", v(80), 16, x)
                e.valu("v_and_b32", x, 0xffff0000, x)
                e.valu("v_add_f32", acc[2 * jj], acc[2 * jj], v(80))
                e.valu("v_add_f32", acc[2 * jj + 1], acc[2 * jj + 1], x)
    for jj in range(4):
        e.valu("v_cvt_pk_bf16_f32", v(16 + jj), acc[2 * jj], acc[2 * jj + 1])
    e.I("buffer_store_dwordx4 v[16:19], v6, s[4:7], 0 offen", [v(16, 4), v(6)], [], "vstore")
    e.label("R_end")
    e.salu("s_endpgm")
    return e


def kd(name, nv, ns, acc):
    return [".p2align 6", f".amdhsa_kernel {name}",
            f"  .amdhsa_next_free_vgpr {nv}", f"  .amdhsa_next_free_sgpr {ns}", f"  .amdhsa_accum_offset {acc}",
            "  .amdhsa_group_segment_fixed_size 0", "  .amdhsa_kernarg_size 104", "  .amdhsa_user_sgpr_count 2",
            "  .amdhsa_user_sgpr_kernarg_segment_ptr 1", "  .amdhsa_system_sgpr_workgroup_id_x 1",
            ".end_amdhsa_kernel"]


def wrap(g, opt):
    e = g.e
    main = f"{NAME}_kernel"
    if opt.dump or opt.noreduce:
        hdr = [f"; @launch grid=(256,1,1) block=(256,1,1) lds={LDS_BYTES}"]
    else:
        hdr = [f"; @launch kernel={main} grid=(256,1,1) block=(256,1,1) lds={LDS_BYTES}",
               "; @launch kernel=reduce_kernel grid=(640,1,1) block=(256,1,1) lds=0"]
    hdr += ["; generated by gen/kgen.py (own generator script)",
            '.amdgcn_target "amdgcn-amd-amdhsa--gfx950"', ".text", f".globl {main}", ".p2align 8",
            f".type {main},@function", f"{main}:"]
    body = "\n".join(hdr) + "\n" + e.text()
    ftr = ['.section .rodata,"a"'] + kd(main, 512, 96, 256)
    if not (opt.dump or opt.noreduce):
        r = build_reduce(opt)
        body += ".globl reduce_kernel\n.p2align 8\n.type reduce_kernel,@function\nreduce_kernel:\n" + r.text()
        ftr += kd("reduce_kernel", 84, 48, 84)
    return body + "\n".join(ftr) + "\n"


if __name__ == "__main__":
    ap = argparse.ArgumentParser()
    ap.add_argument("out")
    ap.add_argument("--stop", default="")
    ap.add_argument("--dump", action="store_true")
    ap.add_argument("--nt", type=int, default=1)
    ap.add_argument("--wnt", type=int, default=0)
    ap.add_argument("--budget", type=int, default=24)
    ap.add_argument("--snt", type=int, default=0)
    ap.add_argument("--rnt", type=int, default=0)
    ap.add_argument("--noreduce", action="store_true")
    ap.add_argument("--wcap0", type=int, default=5)
    ap.add_argument("--wcap", type=int, default=3)
    ap.add_argument("--tmpl", default="KKWVKWVKWVWVW")
    opt = ap.parse_args()
    if opt.stop:
        opt.dump = True
    g = build(opt)
    open(opt.out, "w").write(wrap(g, opt))
    print("instructions:", g.e.ninst)
```

```python
import sys, math, struct, argparse
from emit import Em, Reg, Neg, v, a, s

NAME = "concat_heads__gqa_block_cached__mha_block_cached__near_ridge"
LDS_BYTES = 163840

SRD_K, SRD_V, SRD_WQ, SRD_X, SRD_WO, SRD_WS = (s(4, 4), s(8, 4), s(12, 4), s(16, 4), s(20, 4), s(24, 4))
S_WAVE, S_C = s(28), s(31)
S_W3072, S_W2048 = s(32), s(33)
S_T = [s(34 + i) for i in range(8)]
S_FLAG = s(42)
S_THR = s(43)
S_SO = [s(44), s(45)]
S_ST = s(46)
S_RET = s(48, 2)
S_PF = [s(86), s(87), s(88), s(89)]
S_PTR = 64

V_TID = v(0)
AK = [v(1 + i) for i in range(4)]
AV = [v(5), v(6)]
AW = [v(7 + i) for i in range(4)]
DK = [v(11 + i) for i in range(3)]
DV = [v(14 + i) for i in range(3)]
DW = [v(17 + i) for i in range(5)]
V_L = [v(22), v(23)]
V_ALPHA = v(24)
V_ST = v(25)
V_RINV = v(26)
V_PF = [v(27)]
V_PFD = v(120, 4)
V_T = [v(28 + i) for i in range(12)]
NFR = 6
FR = [v(40 + 4 * i, 4) for i in range(NFR)]
SP = [v(64, 16), v(80, 16)]
NEGM = v(96, 16)
XF = [v(112, 4), v(116, 4)]
OACC = [v(160 + 16 * i, 16) for i in range(6)]
ACCA = [v(96 + 16 * i, 16) for i in range(4)]
ACCB = [v(160 + 16 * i, 16) for i in range(4)]
QF = [a(0, 48), a(48, 48)]
QPACC = [a(96 + 16 * i, 16) for i in range(6)]
EACC = [[a(96 + 64 * c + 16 * i, 16) for i in range(4)] for c in range(2)]

SCALE = (192 ** -0.5) * math.log2(math.e)
THRESH = 8.0

PART_WAVE = 5 * 8 * 1024
PART_BYTES = 4 * PART_WAVE

KB, VB = 65536, 102400
XBA = 61440


def f2u(x):
    return struct.unpack("<I", struct.pack("<f", x))[0]


class Load:
    def __init__(self, kind, stream, size, win, **kw):
        self.kind, self.stream, self.size, self.win = kind, stream, size, win
        self.kw = kw
        self.addr = None
        self.seq = None
        self.cons = None
        self.freed = False


class Stage:
    def __init__(self, kind, loads, **kw):
        self.kind, self.loads, self.kw = kind, loads, kw
        self.pre, self.post, self.mid = [], [], []
        self.prem = {}


class Gen:
    def __init__(self, opt):
        self.e = Em()
        self.opt = opt
        self.jobs = []
        self.prio = []
        self.nm = 0
        self.free = [(0, LDS_BYTES)]
        self.vm = 0
        self.streams = {0: [], 1: []}
        self.next_load = {0: 0, 1: 0}
        self.gates = set()
        self.exposed = 0
        self.stamps = []
        self.rare, self.rareB = [], []
        self.nt = " nt" if opt.nt else ""
        self.wnt = " nt" if opt.wnt else ""
        self.snt = " nt" if opt.snt else ""
        self.xbase = XBA
        self.over = 0

    def alloc(self, size, win, top):
        lo_w, hi_w = win
        order = list(range(len(self.free)))
        if top:
            order.reverse()
        for i in order:
            lo, hi = self.free[i]
            l2, h2 = max(lo, lo_w), min(hi, hi_w)
            if top:
                addr = (h2 - size) // 1024 * 1024
                ok = addr >= l2
            else:
                addr = (l2 + 1023) // 1024 * 1024
                ok = addr + size <= h2
            if ok:
                new = [(lo, addr), (addr + size, hi)]
                self.free[i:i + 1] = [x for x in new if x[1] > x[0]]
                return addr
        return None

    def release(self, addr, size):
        self.free.append((addr, addr + size))
        self.free.sort()
        out = []
        for lo, hi in self.free:
            if out and out[-1][1] == lo:
                out[-1] = (out[-1][0], hi)
            else:
                assert not out or out[-1][1] <= lo
                out.append((lo, hi))
        self.free = out

    def dma_ops(self, L):
        e = self.e
        A = L.addr
        ops = []
        so = S_SO[self.so_flip]
        self.so_flip ^= 1

        def ld(voff, srd, ioff, nt, last=False):
            def f():
                if not self.opt.nodma:
                    e.I(f"buffer_load_dwordx4 {voff}, {srd}, {so} offen offset:{ioff}{nt} lds",
                        [voff, srd, so, "m0"], [], "dma")
                self.vm += 1
                if last:
                    L.seq = self.vm
            return f
        g = L.kw["goff"]
        ops.append(lambda: e.salu(f"s_mov_b32 {so}, {g}", [], [so]))
        if L.kind == "X":
            ops.append(lambda: e.salu(f"s_add_u32 m0, {S_W2048}, {A}", [S_W2048], ["m0"]))
            for p in range(2):
                ops.append(ld(DW[3 + p], SRD_X, p * 1024, " nt" if self.opt.xnt else "", p == 1))
        else:
            srd, D, nt = {"K": (SRD_K, DK, self.nt), "V": (SRD_V, DV, self.nt), "WQ": (SRD_WQ, DW, self.wnt),
                          "WO": (SRD_WO, DW, self.wnt)}[L.kind]
            ops.append(lambda: e.salu(f"s_add_u32 m0, {S_W3072}, {A}", [S_W3072], ["m0"]))
            for p in range(3):
                ops.append(ld(D[p], srd, p * 1024, nt, p == 2))
        return ops

    def pick_loads(self, caps, maxn=99):
        out = []
        while len(out) < maxn:
            cands = []
            for sid in (0, 1):
                st = self.streams[sid]
                i = self.next_load[sid]
                if i >= len(st):
                    continue
                live = sum(1 for L in st[:i] if not L.freed)
                if live >= caps[sid]:
                    continue
                if st[i].kind == "WO" and not self.wo_ready:
                    continue
                cands.append(st[i])
            cands.sort(key=lambda L: L.cons)
            done = False
            for L in cands:
                win = L.win() if callable(L.win) else L.win
                addr = self.alloc(L.size, win, top=(L.kind == "V"))
                if addr is not None:
                    L.addr = addr
                    L.kw["xb"] = self.xbase_load
                    self.next_load[L.stream] += 1
                    out.append(L)
                    done = True
                    break
            if not done:
                break
        return out

    def drain_prio(self):
        while self.prio:
            self.prio.pop(0)()

    def sync(self, need, freed, caps):
        e = self.e
        self.drain_prio()
        for L in need:
            assert L.seq is not None, ("load not issued in time", L.kind, L.kw)
        n = 0
        if need:
            w = min(self.vm - L.seq for L in need)
            if not self.opt.nowait and not (self.opt.nowaitw and need[0].stream == 0 and self.nm > 240):
                e.salu(f"s_waitcnt vmcnt({min(63, w)})")
                n += 1
        if not self.opt.nobar:
            e.salu("s_barrier")
            n += 1
        for L in freed:
            self.release(L.addr, L.size)
            L.freed = True
        for L in self.pick_loads(caps, self.opt.maxissue):
            self.prio += self.dma_ops(L)
        return n

    def read_frag(self, st, m):
        e = self.e
        if self.opt.noread:
            return 0
        F = FR[m % NFR]
        k = st.kind
        A = st.loads[0].addr
        n = 2
        if k == "K":
            e.ds_read_b128(F, AK[m & 3], A - KB + (m >> 2) * 128)
            n = 1
        elif k == "V":
            ks2, Tt = m // 6, m % 6
            for ee in range(2):
                e.ds_read_tr(F.sub(2 * ee, 2), AV[Tt & 1], A - VB + (16 * ks2 + 8 * ee) * 384 + (Tt >> 1) * 128)
        elif k == "QP":
            ks2, Tt = m // 6, m % 6
            if m in (0, 6):
                XL = st.loads[1]
                assert XL.kw["xb"] == self.xbase, "x window mismatch"
                e.ds_read_b128(XF[ks2], AW[2 + ks2], XL.addr - self.xbase)
                n = 3
            for ee in range(2):
                e.ds_read_tr(F.sub(2 * ee, 2), AW[Tt & 1], A + (16 * ks2 + 4 * ee) * 384 + (Tt >> 1) * 128)
        elif k == "OP":
            ks, Tt = m // 4, m % 4
            for ee in range(2):
                e.ds_read_tr(F.sub(2 * ee, 2), AW[Tt], A + ks * 4096 + ee * 1024)
        return n

    def do_mfma(self, st, m):
        e = self.e
        F = FR[m % NFR]
        k = st.kind
        if k == "K":
            S = SP[st.kw["buf"]]
            c = S if m else (None if st.kw["j"] <= 1 else NEGM)
            e.mfma(S, F, QF[st.kw["head"]].sub(4 * m, 4), c)
        elif k == "V":
            ks2, Tt = m // 6, m % 6
            Pf = SP[st.kw["buf"]].sub(8 * ks2, 4)
            first = st.kw["first"] and ks2 == 0
            e.mfma(OACC[Tt], F, Pf, None if first else OACC[Tt])
        elif k == "QP":
            ks2, Tt = m // 6, m % 6
            acc = st.kw["acc"][Tt]
            first = st.kw["first"] and ks2 == 0
            e.mfma(acc, F, XF[ks2], None if first else acc)
        elif k == "OP":
            ks, Tt = m // 4, m % 4
            acc = st.kw["acc"][Tt]
            first = st.kw["first"] and ks == 0
            B = QF[st.kw["head"]].sub(4 * (3 * st.kw["j"] + ks), 4)
            e.mfma(acc, F, B, None if first else acc)
        self.nm += 1

    def add_job(self, fn, cost=1, delay=0, gate=None, tag=None):
        if self.opt.nojobs:
            return
        self.jobs.append((self.nm + delay, cost, fn, gate, tag))

    def fill(self, budget):
        while self.prio and budget > 0:
            self.prio.pop(0)()
            budget -= 1
        while self.jobs and budget > 0:
            av, cost, fn, gate, tag = self.jobs[0]
            if av > self.nm or cost > budget:
                break
            if gate is not None and gate not in self.gates:
                break
            self.jobs.pop(0)
            fn()
            budget -= cost

    def flush_jobs(self):
        n = 0
        while self.jobs:
            _, _, fn, gate, _ = self.jobs.pop(0)
            assert gate is None or gate in self.gates, gate
            fn()
            n += 1
        self.exposed += n

    def flush_tag(self, tag):
        idx = -1
        for i, j in enumerate(self.jobs):
            if j[4] == tag:
                idx = i
        n = 0
        for _ in range(idx + 1):
            _, _, fn, gate, _ = self.jobs.pop(0)
            assert gate is None or gate in self.gates, (gate, tag)
            fn()
            n += 1
        if n:
            self.e.comment(f"flushed {n} jobs for {tag}")
            self.exposed += n

    def run_stages(self, stages, caps_fn):
        e = self.e
        B = self.opt.budget
        first = stages[0]
        self.sync(first.loads, [], caps_fn(0))
        for m in range(NFR):
            self.read_frag(first, m)
        prev = None
        for si, st in enumerate(stages):
            nxt = stages[si + 1] if si + 1 < len(stages) else None
            for fn in st.pre:
                fn()
            for m in range(12):
                for fn in st.prem.get(m, []):
                    fn()
                if m % 3 == 0:
                    regs = []
                    for mm in range(m, m + 3):
                        regs += FR[mm % NFR].regs()
                    if st.kind == "QP":
                        regs += XF[m // 6].regs()
                    e.wait_lds_for(regs)
                self.do_mfma(st, m)
                used = 0
                if m + NFR < 12:
                    used += self.read_frag(st, m + NFR)
                if m == 11 - NFR:
                    for fn in st.mid:
                        fn()
                    used += self.sync(nxt.loads if nxt else [], prev.loads if prev else [], caps_fn(si + 1))
                elif m + NFR >= 12 and nxt is not None:
                    used += self.read_frag(nxt, m + NFR - 12)
                if (m + 1) % 3 == 0:
                    used += 1
                self.fill(B - used)
            for fn in st.post:
                fn()
            prev = st
        self.drain_prio()

    def softmax_jobs(self, buf, first, tag, gate, addneg=False):
        e = self.e
        S = SP[buf]
        t0, t1 = V_T[0], V_T[1]

        def J(fn, **kw):
            self.add_job(fn, tag=tag, **kw)
        if addneg:
            for i in range(16):
                J(lambda i=i: e.valu("v_add_f32", S[i], S[i], NEGM[i]), delay=2 if i == 0 else 0)
        J(lambda: e.valu("v_max3_f32", t0, S[0], S[1], S[2]), delay=2)
        J(lambda: e.valu("v_max3_f32", t1, S[3], S[4], S[5]))
        J(lambda: e.valu("v_max3_f32", t0, t0, S[6], S[7]))
        J(lambda: e.valu("v_max3_f32", t1, t1, S[8], S[9]))
        J(lambda: e.valu("v_max3_f32", t0, t0, S[10], S[11]))
        J(lambda: e.valu("v_max3_f32", t1, t1, S[12], S[13]))
        J(lambda: e.valu("v_max3_f32", t0, t0, S[14], S[15]))
        J(lambda: e.valu("v_max_f32", t0, t0, t1))
        if first:
            J(lambda: e.valu("v_mov_b32", t1, t0))
            J(lambda: e.valu("v_mov_b32", V_L[0], 0))
            J(lambda: e.valu("v_mov_b32", V_L[1], 0))
            J(lambda: e.I(f"v_permlane32_swap_b32 {t0}, {t1}", [t0, t1], [t0, t1], "perm"))
            J(lambda: e.valu("v_max_f32", t0, t0, t1))
            for i in range(16):
                J(lambda i=i: e.valu("v_sub_f32", NEGM[i], 0, t0))
            for i in range(16):
                J(lambda i=i: e.valu("v_sub_f32", S[i], S[i], t0))
        else:
            def decide():
                e.I(f"v_cmp_lt_f32 vcc, {S_THR}, {t0}", [t0, S_THR], ["vcc"], "valu")
                lr, lb = e.newlabel("Lrare"), e.newlabel("Lback")
                e.salu(f"s_cbranch_vccnz {lr}")
                e.label(lb)
                self.rare.append((lr, lb, buf))
            J(decide, cost=2, gate=gate)
        for i in range(16):
            J(lambda i=i: e.valu("v_exp_f32", S[i], S[i], k="trans"), cost=2)
            if i >= 1:
                J(lambda i=i: e.valu("v_add_f32", V_L[(i - 1) & 1], V_L[(i - 1) & 1], S[i - 1]))
            if i == 9:
                for jj in range(4):
                    J(lambda jj=jj: e.valu("v_cvt_pk_bf16_f32", S[jj], S[2 * jj], S[2 * jj + 1]))
        J(lambda: e.valu("v_cvt_pk_bf16_f32", S[8], S[8], S[9]))
        J(lambda: e.valu("v_add_f32", V_L[1], V_L[1], S[15]))
        for jj in range(1, 4):
            J(lambda jj=jj: e.valu("v_cvt_pk_bf16_f32", S[8 + jj], S[8 + 2 * jj], S[8 + 2 * jj + 1]))

    def emit_rare_blocks(self):
        e = self.e
        t0, t1, t2 = V_T[0], V_T[1], V_T[2]
        for lr, lb, buf in self.rare:
            e.label(lr)
            e.salu(f"s_call_b64 {S_RET}, L_rareA{buf}")
            e.salu(f"s_branch {lb}")
        for lr, lb in self.rareB:
            e.label(lr)
            e.salu(f"s_call_b64 {S_RET}, L_rareB")
            e.salu(f"s_branch {lb}")
        for buf in range(2):
            if not any(b == buf for _, _, b in self.rare):
                continue
            S = SP[buf]
            e.label(f"L_rareA{buf}")
            e.nop(16)
            e.valu("v_mov_b32", t1, t0)
            e.I(f"v_permlane32_swap_b32 {t0}, {t1}", [t0, t1], [t0, t1], "perm")
            e.valu("v_max3_f32", t0, t0, t1, 0)
            e.valu("v_exp_f32", t2, Neg(t0), k="trans")
            for i in range(16):
                e.valu("v_sub_f32", S[i], S[i], t0)
            for i in range(16):
                e.valu("v_sub_f32", NEGM[i], NEGM[i], t0)
            e.valu("v_mul_f32", V_L[0], V_L[0], t2)
            e.valu("v_mul_f32", V_L[1], V_L[1], t2)
            e.valu("v_mul_f32", V_ALPHA, V_ALPHA, t2)
            e.salu(f"s_mov_b32 {S_FLAG}, 1", [], [S_FLAG])
            e.nop(4)
            e.salu(f"s_setpc_b64 {S_RET}")
        if self.rareB:
            e.label("L_rareB")
            e.nop(16)
            for Tt in range(6):
                for i in range(16):
                    e.valu("v_mul_f32", OACC[Tt][i], OACC[Tt][i], V_ALPHA)
            e.valu("v_mov_b32", V_ALPHA, 1.0)
            e.salu(f"s_mov_b32 {S_FLAG}, 0", [], [S_FLAG])
            e.nop(4)
            e.salu(f"s_setpc_b64 {S_RET}")

    def rescale_check(self):
        e = self.e
        lr, lb = e.newlabel("LrB"), e.newlabel("LbB")
        e.salu(f"s_cmp_lg_u32 {S_FLAG}, 0", [S_FLAG], ["scc"])
        e.salu(f"s_cbranch_scc1 {lr}")
        e.label(lb)
        self.rareB.append((lr, lb))

    def _run(self, ops, as_jobs, tag, delay_idx=0):
        for i, f in enumerate(ops):
            if as_jobs:
                self.add_job(f, delay=2 if i == delay_idx else 0, tag=tag)
            else:
                f()

    def fin_q(self, acc, head, as_jobs=False, tag=None, tiles=range(6)):
        e = self.e
        ops = []
        k = 0
        for Tt in tiles:
            for a1 in range(2):
                for jj in range(4):
                    s0, s1 = acc[Tt][8 * a1 + 2 * jj], acc[Tt][8 * a1 + 2 * jj + 1]
                    dst = QF[head][4 * (2 * Tt + a1) + jj]
                    ta, tb = V_T[4 + (k % 3) * 2], V_T[5 + (k % 3) * 2]
                    k += 1
                    if acc[Tt].f == "a":
                        ops.append(lambda ta=ta, s0=s0: e.valu("v_accvgpr_read_b32", ta, s0))
                        ops.append(lambda tb=tb, s1=s1: e.valu("v_accvgpr_read_b32", tb, s1))
                        ops.append(lambda ta=ta: e.valu("v_mul_f32", ta, S_C, ta))
                        ops.append(lambda tb=tb: e.valu("v_mul_f32", tb, S_C, tb))
                    else:
                        ops.append(lambda ta=ta, s0=s0: e.valu("v_mul_f32", ta, S_C, s0))
                        ops.append(lambda tb=tb, s1=s1: e.valu("v_mul_f32", tb, S_C, s1))
                    ops.append(lambda ta=ta, tb=tb: e.valu("v_cvt_pk_bf16_f32", ta, ta, tb))
                    ops.append(lambda ta=ta, dst=dst: e.valu("v_accvgpr_write_b32", dst, ta))
        self._run(ops, as_jobs, tag)

    def fin_o(self, head, as_jobs=False, tag=None):
        e = self.e
        t0, t1 = V_RINV, V_T[1]
        ops = []
        ops.append(lambda: e.valu("v_add_f32", t0, V_L[0], V_L[1]))
        ops.append(lambda: e.valu("v_mov_b32", t1, t0))
        ops.append(lambda: e.I(f"v_permlane32_swap_b32 {t0}, {t1}", [t0, t1], [t0, t1], "perm"))
        ops.append(lambda: e.valu("v_add_f32", t0, t0, t1))
        ops.append(lambda: e.valu("v_rcp_f32", t0, t0, k="trans"))
        k = 0
        for Tt in range(6):
            for a1 in range(2):
                for jj in range(4):
                    s0, s1 = OACC[Tt][8 * a1 + 2 * jj], OACC[Tt][8 * a1 + 2 * jj + 1]
                    tc = V_T[4 + (k % 4)]
                    k += 1
                    dst = QF[head][4 * (2 * Tt + a1) + jj]
                    ops.append(lambda s0=s0: e.valu("v_mul_f32", s0, s0, t0))
                    ops.append(lambda s1=s1: e.valu("v_mul_f32", s1, s1, t0))
                    ops.append(lambda tc=tc, s0=s0, s1=s1: e.valu("v_cvt_pk_bf16_f32", tc, s0, s1))
                    ops.append(lambda tc=tc, dst=dst: e.valu("v_accvgpr_write_b32", dst, tc))
        self._run(ops, as_jobs, tag, delay_idx=5)

    def out_jobs(self, acc, c, tag):
        e = self.e
        first = True
        k = 0
        for Tt in range(4):
            for a1 in range(2):
                if acc[Tt].f == "a":
                    data = OUTT[k % 2]
                    k += 1
                else:
                    data = acc[Tt].sub(8 * a1, 4)
                for jj in range(4):
                    s0, s1 = acc[Tt][8 * a1 + 2 * jj], acc[Tt][8 * a1 + 2 * jj + 1]
                    d = data[jj]
                    if acc[Tt].f == "a":
                        ta, tb = V_T[4 + 2 * (jj % 2)], V_T[5 + 2 * (jj % 2)]
                        self.add_job(lambda ta=ta, s0=s0: e.valu("v_accvgpr_read_b32", ta, s0), delay=2 if first else 0, tag=tag)
                        self.add_job(lambda tb=tb, s1=s1: e.valu("v_accvgpr_read_b32", tb, s1), tag=tag)
                        self.add_job(lambda d=d, ta=ta, tb=tb: e.valu("v_cvt_pk_bf16_f32", d, ta, tb), tag=tag)
                    else:
                        self.add_job(lambda d=d, s0=s0, s1=s1: e.valu("v_cvt_pk_bf16_f32", d, s0, s1), delay=2 if first else 0, tag=tag)
                    first = False

                def st(Tt=Tt, a1=a1, data=data):
                    off = (c * 8 + Tt * 2 + a1) * 1024
                    e.salu(f"s_mov_b32 {S_ST}, {off}", [], [S_ST])
                    e.I(f"buffer_store_dwordx4 {data}, {V_ST}, {SRD_WS}, {S_ST} offen{self.snt}", [data, V_ST], [], "vstore")
                    self.vm += 1
                self.add_job(st, cost=2, tag=tag)

    def stamp(self, name, real=False):
        if not self.opt.prof:
            return
        e = self.e
        i = len(self.stamps)
        assert i < 34
        self.stamps.append(name)
        e.salu("s_memrealtime s[90:91]" if real else "s_memtime s[90:91]")
        e.salu("s_waitcnt lgkmcnt(0)")
        e.lds = []
        e.salu(f"s_mov_b32 s{50 + i}, s90")

    def prof_out(self):
        if not self.opt.prof:
            return
        e = self.e
        e.salu("s_load_dwordx2 s[92:93], s[0:1], 96")
        e.salu("s_waitcnt lgkmcnt(0)")
        e.salu("s_add_u32 s92, s92, 0x8000000")
        e.salu("s_addc_u32 s93, s93, 0")
        e.salu("s_mov_b32 s94, 0x1000000")
        e.salu("s_mov_b32 s95, 0x20000")
        e.salu(f"s_lshl_b32 {S_T[0]}, s2, 2", [], [S_T[0]])
        e.salu(f"s_add_u32 {S_T[0]}, {S_T[0]}, {S_WAVE}", [], [S_T[0]])
        e.salu(f"s_lshl_b32 {S_T[0]}, {S_T[0]}, 8", [], [S_T[0]])
        e.valu("v_mov_b32", V_T[1], 0)
        for i in range(len(self.stamps)):
            e.valu("v_mov_b32", V_T[0], s(50 + i))
            e.I(f"buffer_store_dword {V_T[0]}, {V_T[1]}, s[92:95], {S_T[0]} offen offset:{4 * i}", [V_T[0], V_T[1]], [], "vstore")
            e.nop(2)
        e.salu("s_waitcnt vmcnt(0)")
        open(self.opt.out + ".stamps", "w").write("\n".join(self.stamps))

    def prologue(self):
        e = self.e
        P = S_PTR
        e.salu("s_cmp_ge_u32 s2, 256")
        e.salu("s_cbranch_scc1 L_end")
        e.salu(f"s_load_dwordx16 s[{P}:{P + 15}], s[0:1], 0")
        e.salu(f"s_load_dwordx4 s[{P + 16}:{P + 19}], s[0:1], 64")
        e.salu(f"s_load_dwordx2 s[{P + 20}:{P + 21}], s[0:1], 96")
        t = S_T
        e.salu(f"s_and_b32 {t[0]}, s2, 7")
        e.salu(f"s_lshr_b32 {t[1]}, s2, 3")
        e.salu(f"s_lshr_b32 {t[2]}, {t[0]}, 2")
        e.salu(f"s_and_b32 {t[3]}, {t[0]}, 3")
        e.salu(f"s_lshl_b32 {t[3]}, {t[3]}, 2")
        e.salu(f"s_and_b32 {t[4]}, {t[1]}, 3")
        e.salu(f"s_add_u32 {t[3]}, {t[3]}, {t[4]}")
        e.salu(f"s_lshr_b32 {t[4]}, {t[1]}, 2")
        L, T0, T1, T2, T3 = V_T[0], V_T[1], V_T[2], V_T[3], V_T[4]
        IDX, RR, POS = V_T[6], V_T[7], V_T[8]
        e.valu("v_lshrrev_b32", T0, 6, V_TID)
        e.valu("v_and_b32", L, 63, V_TID)
        e.I(f"v_readfirstlane_b32 {S_WAVE}, {T0}", [T0], [S_WAVE], "rfl")
        e.salu(f"s_mul_i32 {S_W3072}, {S_WAVE}, 3072", [S_WAVE], [S_W3072])
        e.salu(f"s_lshl_b32 {S_W2048}, {S_WAVE}, 11")
        e.salu(f"s_mov_b32 {S_C}, {f2u(SCALE):#x}")
        e.salu(f"s_mov_b32 {S_THR}, {f2u(THRESH):#x}")
        e.salu(f"s_mov_b32 {S_FLAG}, 0")
        e.salu(f"s_mul_i32 {t[5]}, {S_WAVE}, 98304")
        e.salu(f"s_lshr_b32 {t[6]}, {S_WAVE}, 1")
        e.salu(f"s_lshl_b32 {t[6]}, {t[6]}, 2")
        for p in range(3):
            e.valu("v_add_u32", IDX, 64 * p, L)
            e.valu("v_mul_u32_u24", RR, 2731, IDX)
            e.valu("v_lshrrev_b32", RR, 16, RR)
            e.valu("v_mul_u32_u24", T0, 24, RR)
            e.valu("v_sub_u32", POS, IDX, T0)
            e.valu("v_bfe_u32", T1, RR, 1, 1)
            e.valu("v_lshlrev_b32", T1, 2, T1)
            e.valu("v_xor_b32", T1, T1, POS)
            e.valu("v_lshlrev_b32", T1, 4, T1)
            if p:
                e.valu("v_subrev_u32", T1, 1024 * p, T1)
            e.valu("v_mul_u32_u24", T0, 12288, RR)
            e.valu("v_add3_u32", DW[p], T0, T1, t[5])
            e.valu("v_mul_u32_u24", T3, 384, RR)
            e.valu("v_add3_u32", DV[p], T3, T1, S_W3072)
            e.valu("v_bfe_u32", T1, RR, 1, 2)
            e.valu("v_or_b32", T1, t[6], T1)
            e.valu("v_xor_b32", T1, T1, POS)
            e.valu("v_lshlrev_b32", T1, 4, T1)
            if p:
                e.valu("v_subrev_u32", T1, 1024 * p, T1)
            e.valu("v_add3_u32", DK[p], T3, T1, S_W3072)
        e.valu("v_lshrrev_b32", T0, 2, L)
        e.valu("v_mul_u32_u24", T0, 1280, T0)
        e.valu("v_bfe_u32", T1, L, 4, 2)
        e.valu("v_and_b32", T2, 3, L)
        e.valu("v_xor_b32", T1, T1, T2)
        e.valu("v_lshlrev_b32", T1, 4, T1)
        e.salu(f"s_mul_i32 {t[5]}, {S_WAVE}, 40960")
        e.valu("v_add3_u32", DW[3], T0, T1, t[5])
        e.valu("v_add_u32", DW[4], 20480 - 1024, DW[3])
        e.salu("s_waitcnt lgkmcnt(0)")
        e.salu(f"s_cmp_eq_u32 {t[2]}, 0")
        for srd, off in ((SRD_X, 0), (SRD_K, 2), (SRD_V, 4), (SRD_WQ, 6), (SRD_WO, 8)):
            e.salu(f"s_cselect_b32 {srd[0]}, s{P + off}, s{P + off + 10}")
            e.salu(f"s_cselect_b32 {srd[1]}, s{P + off + 1}, s{P + off + 11}")
        e.salu(f"s_mul_i32 {t[6]}, {t[3]}, 768")
        e.salu(f"s_add_u32 {SRD_WQ[0]}, {SRD_WQ[0]}, {t[6]}")
        e.salu(f"s_addc_u32 {SRD_WQ[1]}, {SRD_WQ[1]}, 0")
        e.salu(f"s_sub_u32 {SRD_WQ[2]}, 7864320, {t[6]}")
        e.salu(f"s_mov_b32 {SRD_WQ[3]}, 0x20000")
        e.salu(f"s_mul_i32 {t[6]}, {t[4]}, 143360")
        e.salu(f"s_add_u32 {SRD_X[0]}, {SRD_X[0]}, {t[6]}")
        e.salu(f"s_addc_u32 {SRD_X[1]}, {SRD_X[1]}, 0")
        e.salu(f"s_sub_u32 {SRD_X[2]}, 1146880, {t[6]}")
        e.salu(f"s_mov_b32 {SRD_X[3]}, 0x20000")
        e.salu(f"s_lshl_b32 {t[5]}, {t[4]}, 4")
        e.salu(f"s_add_u32 {t[5]}, {t[5]}, {t[3]}")
        e.salu(f"s_mul_i32 {t[6]}, {t[5]}, 393216")
        for srd in (SRD_K, SRD_V):
            e.salu(f"s_add_u32 {srd[0]}, {srd[0]}, {t[6]}")
            e.salu(f"s_addc_u32 {srd[1]}, {srd[1]}, 0")
            e.salu(f"s_mov_b32 {srd[2]}, 393216")
            e.salu(f"s_mov_b32 {srd[3]}, 0x20000")

    def prologue2(self):
        e = self.e
        P = S_PTR
        t = S_T
        e.salu(f"s_mul_i32 {t[6]}, {t[3]}, 491520")
        e.salu(f"s_add_u32 {SRD_WO[0]}, {SRD_WO[0]}, {t[6]}")
        e.salu(f"s_addc_u32 {SRD_WO[1]}, {SRD_WO[1]}, 0")
        e.salu(f"s_mov_b32 {SRD_WO[2]}, 491520")
        e.salu(f"s_mov_b32 {SRD_WO[3]}, 0x20000")
        e.salu(f"s_mov_b32 {SRD_WS[0]}, s{P + 20}")
        e.salu(f"s_mov_b32 {SRD_WS[1]}, s{P + 21}")
        e.salu(f"s_lshl_b32 {t[6]}, {t[2]}, 7")
        e.salu(f"s_add_u32 {t[6]}, {t[6]}, {t[5]}")
        e.salu(f"s_mul_i32 {t[6]}, {t[6]}, {PART_BYTES}")
        e.salu(f"s_add_u32 {SRD_WS[0]}, {SRD_WS[0]}, {t[6]}")
        e.salu(f"s_addc_u32 {SRD_WS[1]}, {SRD_WS[1]}, 0")
        e.salu(f"s_mov_b32 {SRD_WS[2]}, {PART_BYTES}")
        e.salu(f"s_mov_b32 {SRD_WS[3]}, 0x20000")
        L, T0, T1, T2, T3, T4, HH, RRr = V_T[0], V_T[1], V_T[2], V_T[3], V_T[4], V_T[5], V_T[6], V_T[7]
        e.valu("v_and_b32", L, 63, V_TID)
        e.valu("v_lshrrev_b32", HH, 5, L)
        e.valu("v_bfe_u32", RRr, L, 2, 2)
        e.valu("v_bfe_u32", T0, L, 4, 1)
        e.valu("v_lshlrev_b32", T0, 5, T0)
        e.valu("v_and_b32", T1, 1, L)
        e.valu("v_lshl_or_b32", T0, T1, 4, T0)
        e.valu("v_bfe_u32", T1, L, 1, 1)
        e.valu("v_lshl_or_b32", T0, T1, 3, T0)
        e.valu("v_bfe_u32", T1, L, 3, 1)
        e.valu("v_lshl_or_b32", T2, T1, 6, T0)
        e.valu("v_lshl_add_u32", T3, HH, 3, RRr)
        e.valu("v_mul_u32_u24", T4, 384, T3)
        e.valu("v_add_u32", AW[0], T4, T2)
        e.valu("v_xor_b32", AW[1], 64, AW[0])
        e.valu("v_and_b32", T0, 31, L)
        e.valu("v_xor_b32", T1, RRr, HH)
        e.valu("v_lshlrev_b32", T4, 6, T0)
        e.valu("v_lshl_or_b32", T4, T1, 4, T4)
        e.salu(f"s_add_u32 {t[7]}, {S_W2048}, {XBA}")
        e.valu("v_add_u32", AW[2], t[7], T4)
        e.valu("v_xor_b32", AW[3], 32, AW[2])
        e.valu("v_lshl_add_u32", T3, HH, 2, RRr)
        e.valu("v_mul_u32_u24", T3, 384, T3)
        e.valu("v_add3_u32", AV[0], T3, T2, 0)
        e.valu("v_add_u32", AV[0], VB, AV[0])
        e.valu("v_xor_b32", AV[1], 64, AV[0])
        e.valu("v_bfe_u32", T1, L, 1, 2)
        e.valu("v_bfe_u32", T2, L, 4, 1)
        e.valu("v_lshl_or_b32", T1, T2, 2, T1)
        e.valu("v_xor_b32", T1, T1, HH)
        e.valu("v_mul_u32_u24", T2, 384, T0)
        e.valu("v_lshl_or_b32", AK[0], T1, 4, T2)
        e.valu("v_add_u32", AK[0], KB, AK[0])
        for j in range(1, 4):
            e.valu("v_xor_b32", AK[j], j << 5, AK[0])
        e.valu("v_mov_b32", V_ALPHA, 1.0)
        e.valu("v_lshlrev_b32", T1, 4, L)
        e.salu(f"s_mul_i32 {t[7]}, {S_WAVE}, {PART_WAVE}")
        e.valu("v_add_u32", V_ST, t[7], T1)
        e.salu(f"s_lshl_b32 {t[7]}, {S_WAVE}, 5")
        e.valu("v_add_u32", T0, t[7], T0)
        e.I(f"v_cmp_le_u32 vcc, 112, {T0}", [T0], ["vcc"], "valu")
        e.valu("v_mov_b32", T1, 0x7ff00000)
        e.I(f"v_cndmask_b32 {V_ST}, {V_ST}, {T1}, vcc", [V_ST, T1, "vcc"], [V_ST], "valu")

    def pf_setup(self):
        e = self.e
        t = S_T
        e.valu("v_and_b32", V_PF[0], 63, V_TID)
        e.valu("v_lshlrev_b32", V_PF[0], 4, V_PF[0])
        e.salu(f"s_mul_i32 {S_PF[0]}, {t[4]}, {80 * 12288}")
        e.salu(f"s_and_b32 {t[7]}, {t[3]}, 3")
        e.salu(f"s_mul_i32 {t[7]}, {t[7]}, 35840")
        e.salu(f"s_mul_i32 {t[6]}, {S_WAVE}, 8960")
        e.salu(f"s_add_u32 {S_PF[1]}, {t[7]}, {t[6]}")
        e.salu(f"s_mul_i32 {S_PF[2]}, {t[4]}, 30720")
        e.salu(f"s_mul_i32 {t[6]}, {S_WAVE}, 7680")
        e.salu(f"s_add_u32 {S_PF[2]}, {S_PF[2]}, {t[6]}")

    def pf_ops(self, what):
        e = self.e
        pnt = " nt" if self.opt.pnt else ""
        so = S_PF[3]
        ops = []

        def sadd(base, add):
            ops.append(lambda: e.salu(f"s_add_u32 {so}, {base}, {add}", [], [so]))

        def ld(vo, srd, ioff):
            def f():
                e.I(f"buffer_load_dwordx4 {V_PFD}, {vo}, {srd}, {so} offen offset:{ioff}{pnt}", [vo], [], "vmem")
                self.vm += 1
            ops.append(f)
        if what in ("wq0", "wq1"):
            hb = 384 if what == "wq1" else 0
            for k in range(3):
                sadd(S_PF[0], hb + 32 * k * 12288)
                for p in range(3):
                    ld(DW[p], SRD_WQ, p * 1024)
        elif what == "x":
            for k in range(9):
                if k % 4 == 0:
                    sadd(S_PF[1], k * 1024)
                ld(V_PF[0], SRD_X, (k % 4) * 1024)
        else:
            hb = 192 * 1280 if what == "wo1" else 0
            for k in range(8):
                if k % 4 == 0:
                    sadd(S_PF[2], hb + k * 1024)
                ld(V_PF[0], SRD_WO, (k % 4) * 1024)
        return ops

    def pf(self, what, now=False):
        for f in self.pf_ops(what):
            if now:
                f()
            else:
                self.add_job(f, tag="pf")

    def switch_x_window(self):
        e = self.e
        e.valu("v_subrev_u32", AW[2], XBA, AW[2])
        e.valu("v_subrev_u32", AW[3], XBA, AW[3])
        self.xbase = 0

    def setup_wo_dma(self):
        e = self.e
        L, T0, T1, T2 = DW[1], DW[2], V_T[10], V_T[11]
        e.valu("v_and_b32", L, 63, V_TID)
        e.valu("v_lshrrev_b32", T0, 4, L)
        e.valu("v_lshlrev_b32", T1, 2, T0)
        e.valu("v_and_b32", T2, 15, L)
        e.valu("v_xor_b32", T1, T1, T2)
        e.valu("v_lshlrev_b32", T1, 4, T1)
        e.valu("v_mul_u32_u24", T0, 1280, T0)
        e.salu(f"s_mul_i32 {S_T[7]}, {S_WAVE}, 15360")
        e.valu("v_add3_u32", DW[0], T0, T1, S_T[7])
        e.valu("v_add_u32", DW[1], 4096, DW[0])
        e.valu("v_add_u32", DW[2], 8192, DW[0])
        self.wo_ready = True

    def setup_wo_read(self):
        e = self.e
        L, T0, T1, T3 = AW[1], AW[2], V_T[10], V_T[11]
        e.valu("v_and_b32", L, 63, V_TID)
        e.valu("v_bfe_u32", T0, L, 4, 1)
        e.valu("v_lshlrev_b32", T0, 5, T0)
        e.valu("v_and_b32", T1, 1, L)
        e.valu("v_lshl_or_b32", T0, T1, 4, T0)
        e.valu("v_bfe_u32", T1, L, 1, 1)
        e.valu("v_lshl_or_b32", T0, T1, 3, T0)
        e.valu("v_bfe_u32", T1, L, 2, 2)
        e.valu("v_lshl_or_b32", T0, T1, 6, T0)
        e.valu("v_lshrrev_b32", T3, 5, L)
        e.valu("v_lshl_add_u32", T3, T3, 3, T1)
        e.valu("v_lshl_or_b32", AW[0], T3, 8, T0)
        for j in range(1, 4):
            e.valu("v_xor_b32", AW[j], j << 6, AW[0])


OUTT = [v(64, 4), v(68, 4)]


def build(opt):
    g = Gen(opt)
    g.so_flip = 0
    g.wo_ready = False
    g.kvlo = 102400
    g.xbase_load = XBA
    e = g.e
    W, KV = 0, 1

    def mk(kind, stream, size, win, **kw):
        L = Load(kind, stream, size, win, **kw)
        g.streams[stream].append(L)
        return L

    WWIN = (0, 61440)

    def qp_stage(head, sidx, acc):
        L = mk("WQ", W, 12288, WWIN, goff=head * 384 + sidx * 32 * 12288)
        X = mk("X", W, 8192, (XBA, 102400) if head == 0 else WWIN, goff=sidx * 64, head=head)
        return Stage("QP", [L, X], acc=acc, first=(sidx == 0), head=head, i=sidx)

    def k_stage(head, j):
        L = mk("K", KV, 12288, lambda: (max(KB, g.kvlo), KB + 61440), goff=(head * 16 + j) * 12288)
        return Stage("K", [L], head=head, buf=j & 1, j=j)

    def v_stage(head, j):
        L = mk("V", KV, 12288, (VB, VB + 61440), goff=(head * 16 + j) * 12288)
        return Stage("V", [L], head=head, buf=j & 1, j=j, first=(j == 0))

    def op_stage(head, c, j, acc, first):
        L = mk("WO", W, 12288, WWIN, goff=(head * 192 + 48 * j) * 1280 + c * 256)
        return Stage("OP", [L], head=head, c=c, j=j, acc=acc, first=first)

    ph1 = [qp_stage(0, i, OACC) for i in range(20)]

    def attn(head, wstages, tmpl):
        out = []
        wi = list(wstages)
        for it in range(4):
            b = 4 * it
            cnt = {"K": 0, "V": 0}
            for ch in tmpl.split(",")[it] if "," in tmpl else tmpl:
                if ch == "W":
                    if wi:
                        out.append(wi.pop(0)())
                    continue
                j = b + cnt[ch]
                cnt[ch] += 1
                if ch == "K":
                    st = k_stage(head, j)
                    st.post.append(lambda j=j: g.softmax_jobs(j & 1, j == 0, ("sm", head, j), ("v", head, j - 1), addneg=(j == 1)))
                else:
                    st = v_stage(head, j)
                    st.pre.append(lambda j=j: g.flush_tag(("sm", head, j)))
                    if j > 0:
                        st.pre.append(lambda: g.rescale_check())
                    st.pre.append(lambda j=j: g.gates.add(("v", head, j)))
                out.append(st)
        assert not wi
        return out

    def qp1(i):
        st = qp_stage(1, i, QPACC)
        if i == 19:
            st.post.append(lambda: g.fin_q(QPACC, 1, as_jobs=True, tag="finq1"))
            st.mid.append(lambda: g.setup_wo_read())
        return st

    NE = opt.nearly

    def op0(i):
        c, j = i // 4, i % 4
        st = op_stage(0, c, j, EACC[c], j == 0)
        if i == 0:
            st.pre.append(lambda: g.flush_tag("fino0"))
        return st

    ph2 = attn(0, [(lambda i=i: qp1(i)) for i in range(20)], opt.tmpl)
    for Tt in range(6):
        ph2[0].prem[2 * Tt] = [lambda Tt=Tt: g.fin_q(OACC, 0, tiles=[Tt])]
    lastv = [st for st in ph2 if st.kind == "V"][-1]
    lastv.post.append(lambda: g.fin_o(0, as_jobs=True, tag="fino0"))
    tmpl2 = {0: "KKVKVKVV", 1: "KKVKVKVWV", 2: "KKVKWVKVWV"}[NE]
    ph3 = attn(1, [(lambda i=i: op0(i)) for i in range(4 * NE)], tmpl2)
    ph3[0].pre.insert(0, lambda: g.flush_tag("finq1"))
    firstv = [st for st in ph3 if st.kind == "V"][0]
    firstv.pre.insert(0, lambda: g.flush_tag("fino0"))
    ph4 = []
    late = list(range(NE, 5))
    seq = []
    for n, c in enumerate(late):
        acc = (ACCA, ACCB)[n & 1]
        seq.append((c, acc, [0, 1]))
    for c in range(NE):
        seq.append((c, EACC[c], [1]))
    firstop = True
    prev_same = {}
    for c, acc, heads in seq:
        for hi, head in enumerate(heads):
            for j in range(4):
                st = op_stage(head, c, j, acc, first=(j == 0 and hi == 0 and len(heads) == 2))
                if firstop:
                    st.pre.append(lambda: g.flush_jobs())
                    st.pre.append(lambda: g.fin_o(1, as_jobs=True, tag="fino1"))
                    firstop = False
                if head == 1 and j == 0:
                    st.pre.append(lambda: g.flush_tag("fino1"))
                if j == 0 and hi == 0 and id(acc) in prev_same:
                    st.pre.append(lambda pc=prev_same[id(acc)]: g.flush_tag(("out", pc)))
                if acc is ACCB and j == 0 and hi == 0:
                    st.pre.append(lambda: g.flush_tag("fino1"))
                if j == 3 and head == 1:
                    st.post.append(lambda c=c, acc=acc: g.out_jobs(acc, c, ("out", c)))
                ph4.append(st)
        prev_same[id(acc)] = c
    allst = ph1 + ph2 + ph3 + ph4
    for i, st in enumerate(allst):
        for L in st.loads:
            L.cons = i
    ph1[-1].mid.append(lambda: g.switch_x_window())

    orig_pick = g.pick_loads

    def pick2(caps, maxn=99):
        out = []
        while len(out) < maxn:
            st = g.streams[0]
            i = g.next_load[0]
            if i < len(st) and st[i].kind == "X":
                g.xbase_load = XBA if st[i].kw["head"] == 0 else 0
            r = orig_pick(caps, 1)
            if not r:
                break
            out += r
        return out
    g.pick_loads = pick2

    g.prologue()
    g.stamp("real0", real=True)
    g.stamp("pro")
    first_loads = g.pick_loads({0: 2 * opt.wcap0, 1: opt.kv0})
    for L in first_loads[:2 * opt.pre]:
        for f in g.dma_ops(L):
            f()
    if opt.pf:
        g.pf_setup()
        g.pf("wq0", now=True)
        if opt.pfx:
            g.pf("x", now=True)
        ph1[opt.pfq1].mid.append(lambda: g.pf("wq1"))
        ph2[opt.pfo0].mid.append(lambda: g.pf("wo0"))
        ph3[opt.pfo1].mid.append(lambda: g.pf("wo1"))
    for L in first_loads[2 * opt.pre:]:
        for f in g.dma_ops(L):
            f()
    g.prologue2()
    ph1[0].pre.append(lambda: g.stamp("qp0_first"))
    ph1[10].pre.append(lambda: g.stamp("qp0_half"))
    ph2[0].pre.insert(0, lambda: g.stamp("qp0_end"))
    for ph, nm in ((ph2, "u1"), (ph3, "u2")):
        for st in ph:
            if st.kind == "K" and st.kw["j"] % 4 == 0:
                st.pre.append(lambda nm=nm, j=st.kw["j"]: g.stamp(f"{nm}_it{j // 4}"))
    ph3[0].pre.insert(0, lambda: g.stamp("u1_end"))
    ph4[0].pre.insert(0, lambda: g.stamp("u2_end"))
    for i in range(0, len(ph4), 8):
        ph4[i].pre.append(lambda i=i: g.stamp(f"op_{i}"))
    nq = len(ph1) + len(ph2)

    def caps(si):
        if not g.wo_ready:
            st = g.streams[0]
            i = g.next_load[0]
            if i < len(st) and st[i].kind == "WO" and not g.prio:
                g.setup_wo_dma()
        xa_left = any(L.kind == "X" and L.kw["head"] == 0 and L.addr is None for L in g.streams[0])
        if not xa_left:
            g.kvlo = 0
        if si < 16:
            return {0: 2 * opt.wcap0, 1: 99 if si >= opt.kvstart else 0}
        if si < nq:
            return {0: 2 * opt.wcap, 1: 99}
        return {0: 5, 1: 99}

    if opt.only1:
        for i in range(1, 20, 2):
            ph1[i].pre.append(lambda i=i: g.stamp(f"qp_{i}"))
        allst = ph1
    g.run_stages(allst, caps)
    g.stamp("mfma_end")
    g.flush_jobs()
    e.salu("s_waitcnt vmcnt(0)")
    g.stamp("end")
    g.stamp("real1", real=True)
    g.prof_out()
    print("exposed flushed jobs:", g.exposed)
    e.label("L_end")
    e.salu("s_endpgm")
    g.emit_rare_blocks()
    return g


def build_reduce(opt):
    e = Em()
    e.salu("s_cmp_ge_u32 s2, 640")
    e.salu("s_cbranch_scc1 R_end")
    e.salu("s_load_dwordx2 s[4:5], s[0:1], 80")
    e.salu("s_load_dwordx2 s[8:9], s[0:1], 96")
    e.salu("s_mov_b32 s12, 0x6666667")
    e.salu("s_mul_hi_u32 s13, s2, s12")
    e.salu("s_mul_i32 s14, s13, 40")
    e.salu("s_sub_u32 s14, s2, s14")
    e.valu("v_lshrrev_b32", v(1), 6, v(0))
    e.valu("v_and_b32", v(2), 63, v(0))
    e.valu("v_mul_u32_u24", v(3), PART_WAVE, v(1))
    e.valu("v_lshl_add_u32", v(3), v(2), 4, v(3))
    e.salu("s_lshl_b32 s15, s14, 10")
    e.valu("v_add_u32", v(3), s(15), v(3))
    e.valu("v_and_b32", v(4), 31, v(2))
    e.valu("v_lshl_add_u32", v(4), v(1), 5, v(4))
    e.I("v_cmp_le_u32 vcc, 112, v4", [v(4)], ["vcc"], "valu")
    e.valu("v_mov_b32", v(5), 0x7ff00000)
    e.I("v_cndmask_b32 v3, v3, v5, vcc", [v(3), v(5), "vcc"], [v(3)], "valu")
    e.salu("s_and_b32 s16, s13, 7")
    e.salu("s_lshr_b32 s17, s13, 3")
    e.salu("s_mul_i32 s16, s16, 286720")
    e.salu("s_mul_i32 s17, s17, 1280")
    e.salu("s_add_u32 s16, s16, s17")
    e.salu("s_lshl_b32 s17, s14, 5")
    e.salu("s_add_u32 s16, s16, s17")
    e.valu("v_mul_u32_u24", v(6), 2560, v(4))
    e.valu("v_lshrrev_b32", v(7), 5, v(2))
    e.valu("v_lshl_add_u32", v(6), v(7), 4, v(6))
    e.valu("v_add_u32", v(6), s(16), v(6))
    e.I("v_cndmask_b32 v6, v6, v5, vcc", [v(6), v(5), "vcc"], [v(6)], "valu")
    e.salu("s_waitcnt lgkmcnt(0)")
    e.salu("s_mov_b32 s6, 2293760")
    e.salu("s_mov_b32 s7, 0x20000")
    e.salu(f"s_mul_i32 s18, s13, {16 * PART_BYTES}")
    e.salu("s_add_u32 s8, s8, s18")
    e.salu("s_addc_u32 s9, s9, 0")
    e.salu(f"s_mov_b32 s10, {16 * PART_BYTES}")
    e.salu("s_mov_b32 s11, 0x20000")
    rnt = " nt" if opt.rnt else ""
    for hp in range(16):
        e.salu(f"s_mov_b32 s{20 + hp}, {hp * PART_BYTES}")
    for hp in range(16):
        e.I(f"buffer_load_dwordx4 v[{16 + 4 * hp}:{19 + 4 * hp}], v3, s[8:11], s{20 + hp} offen{rnt}", [v(3)], [], "vmem")
    acc = [v(8 + i) for i in range(8)]
    for hp in range(16):
        e.salu(f"s_waitcnt vmcnt({15 - hp})")
        for jj in range(4):
            x = v(16 + 4 * hp + jj)
            if hp == 0:
                e.valu("v_lshlrev_b32", acc[2 * jj], 16, x)
                e.valu("v_and_b32", acc[2 * jj + 1], 0xffff0000, x)
            else:
                e.valu("v_lshlrev_b32", v(80), 16, x)
                e.valu("v_and_b32", x, 0xffff0000, x)
                e.valu("v_add_f32", acc[2 * jj], acc[2 * jj], v(80))
                e.valu("v_add_f32", acc[2 * jj + 1], acc[2 * jj + 1], x)
    for jj in range(4):
        e.valu("v_cvt_pk_bf16_f32", v(16 + jj), acc[2 * jj], acc[2 * jj + 1])
    e.I("buffer_store_dwordx4 v[16:19], v6, s[4:7], 0 offen", [v(16, 4), v(6)], [], "vstore")
    e.label("R_end")
    e.salu("s_endpgm")
    return e


def kd(name, nv, ns, acc):
    return [".p2align 6", f".amdhsa_kernel {name}",
            f"  .amdhsa_next_free_vgpr {nv}", f"  .amdhsa_next_free_sgpr {ns}", f"  .amdhsa_accum_offset {acc}",
            "  .amdhsa_group_segment_fixed_size 0", "  .amdhsa_kernarg_size 104", "  .amdhsa_user_sgpr_count 2",
            "  .amdhsa_user_sgpr_kernarg_segment_ptr 1", "  .amdhsa_system_sgpr_workgroup_id_x 1",
            ".end_amdhsa_kernel"]


def wrap(g, opt):
    e = g.e
    main = f"{NAME}_kernel"
    if opt.noreduce:
        hdr = [f"; @launch grid=(256,1,1) block=(256,1,1) lds={LDS_BYTES}"]
    else:
        hdr = [f"; @launch kernel={main} grid=(256,1,1) block=(256,1,1) lds={LDS_BYTES}",
               "; @launch kernel=reduce_kernel grid=(640,1,1) block=(256,1,1) lds=0"]
    hdr += ["; generated by gen/kgen2.py (own generator script)",
            '.amdgcn_target "amdgcn-amd-amdhsa--gfx950"', ".text", f".globl {main}", ".p2align 8",
            f".type {main},@function", f"{main}:"]
    body = "\n".join(hdr) + "\n" + e.text()
    ftr = ['.section .rodata,"a"'] + kd(main, 512, 96, 256)
    if not opt.noreduce:
        r = build_reduce(opt)
        body += ".globl reduce_kernel\n.p2align 8\n.type reduce_kernel,@function\nreduce_kernel:\n" + r.text()
        ftr += kd("reduce_kernel", 84, 48, 84)
    return body + "\n".join(ftr) + "\n"


if __name__ == "__main__":
    ap = argparse.ArgumentParser()
    ap.add_argument("out")
    ap.add_argument("--nt", type=int, default=1)
    ap.add_argument("--wnt", type=int, default=0)
    ap.add_argument("--snt", type=int, default=0)
    ap.add_argument("--rnt", type=int, default=0)
    ap.add_argument("--budget", type=int, default=6)
    ap.add_argument("--prof", action="store_true")
    ap.add_argument("--noreduce", action="store_true")
    for o in ("nodma", "nowait", "nobar", "nojobs", "noread", "nowaitw"):
        ap.add_argument("--" + o, action="store_true")
    ap.add_argument("--wcap0", type=int, default=5)
    ap.add_argument("--wcap", type=int, default=3)
    ap.add_argument("--kv0", type=int, default=0)
    ap.add_argument("--maxissue", type=int, default=3)
    ap.add_argument("--nearly", type=int, default=2)
    ap.add_argument("--tmpl", default="KKWVWKWVWKWVWV,KKWVWKWVWKWVWV,KKWVWKWVWKWVWV,KKWVKWVKVV")
    ap.add_argument("--pf", type=int, default=1)
    ap.add_argument("--pnt", type=int, default=0)
    ap.add_argument("--pfq1", type=int, default=6)
    ap.add_argument("--pfo0", type=int, default=36)
    ap.add_argument("--pfo1", type=int, default=20)
    ap.add_argument("--xnt", type=int, default=0)
    ap.add_argument("--pre", type=int, default=1)
    ap.add_argument("--only1", action="store_true")
    ap.add_argument("--pfx", type=int, default=1)
    ap.add_argument("--kvstart", type=int, default=0)
    opt = ap.parse_args()
    g = build(opt)
    open(opt.out, "w").write(wrap(g, opt))
    print("instructions:", g.e.ninst)
```

```python
import sys, math, struct, argparse
from emit import Em, Reg, Neg, v, a, s

NAME = "concat_heads__gqa_block_cached__mha_block_cached__near_ridge"
LDS_BYTES = 163840

SRD_K, SRD_V, SRD_WQ, SRD_X, SRD_WO, SRD_WS = (s(4, 4), s(8, 4), s(12, 4), s(16, 4), s(20, 4), s(24, 4))
S_WAVE, S_C = s(28), s(31)
S_U6144, S_U4096 = s(32), s(33)
S_U = s(29)
S_W2048 = s(30)
S_CMP = s(92, 2)
S_T = [s(34 + i) for i in range(8)]
S_FLAG = s(42)
S_THR = s(43)
S_SO = [s(44), s(45)]
S_ST = s(46)
S_RET = s(48, 2)
S_PF = [s(86), s(87), s(88), s(89)]
S_PTR = 64

V_TID = v(0)
AK = [v(1 + i) for i in range(4)]
AV = [v(5), v(6)]
AW = [v(7 + i) for i in range(4)]
DD = [v(11 + i) for i in range(6)]
V_L = [v(22), v(23)]
V_ALPHA = v(24)
V_ST = v(25)
V_RINV = v(26)
V_PF = [v(27), v(124), v(125), v(126)]
V_PFD = v(120, 4)
V_T = [v(28 + i) for i in range(12)]
NFR = 6
FR = [v(40 + 4 * i, 4) for i in range(NFR)]
SP = [v(64, 16), v(80, 16)]
NEGM = v(96, 16)
XF = [v(112, 4), v(116, 4)]
OACC = [v(160 + 16 * i, 16) for i in range(6)]
ACCA = [v(96 + 16 * i, 16) for i in range(4)]
ACCB = [v(160 + 16 * i, 16) for i in range(4)]
QF = [a(0, 48), a(48, 48)]
QPACC = [a(96 + 16 * i, 16) for i in range(6)]
EACC = [[a(96 + 64 * c + 16 * i, 16) for i in range(4)] for c in range(2)]
WACC = EACC[0]
STASH = [a(160 + 32 * i, 32) for i in range(3)]

SCALE = (192 ** -0.5) * math.log2(math.e)
THRESH = 8.0

PART_WAVE = 5 * 8 * 1024
PART_BYTES = 4 * PART_WAVE

KB, VB = 65536, 102400
XBA = 61440


def f2u(x):
    return struct.unpack("<I", struct.pack("<f", x))[0]


class Load:
    def __init__(self, kind, stream, size, win, **kw):
        self.kind, self.stream, self.size, self.win = kind, stream, size, win
        self.kw = kw
        self.addr = None
        self.seq = None
        self.cons = None
        self.freed = False


class Stage:
    def __init__(self, kind, loads, **kw):
        self.kind, self.loads, self.kw = kind, loads, kw
        self.pre, self.post, self.mid = [], [], []
        self.prem = {}


class Gen:
    def __init__(self, opt):
        self.e = Em()
        self.opt = opt
        self.jobs = []
        self.prio = []
        self.nm = 0
        self.free = [(0, LDS_BYTES)]
        self.vm = [0, 0]
        self.streams = {0: [], 1: []}
        self.next_load = {0: 0, 1: 0}
        self.gates = set()
        self.exposed = 0
        self.stamps = []
        self.rare, self.rareB = [], []
        self.nt = " nt" if opt.nt else ""
        self.wnt = " nt" if opt.wnt else ""
        self.snt = " nt" if opt.snt else ""
        self.xbase = XBA
        self.over = 0

    def alloc(self, size, win, top):
        lo_w, hi_w = win
        order = list(range(len(self.free)))
        if top:
            order.reverse()
        for i in order:
            lo, hi = self.free[i]
            l2, h2 = max(lo, lo_w), min(hi, hi_w)
            if top:
                addr = (h2 - size) // 1024 * 1024
                ok = addr >= l2
            else:
                addr = (l2 + 1023) // 1024 * 1024
                ok = addr + size <= h2
            if ok:
                new = [(lo, addr), (addr + size, hi)]
                self.free[i:i + 1] = [x for x in new if x[1] > x[0]]
                return addr
        return None

    def release(self, addr, size):
        self.free.append((addr, addr + size))
        self.free.sort()
        out = []
        for lo, hi in self.free:
            if out and out[-1][1] == lo:
                out[-1] = (out[-1][0], hi)
            else:
                assert not out or out[-1][1] <= lo
                out.append((lo, hi))
        self.free = out

    def role_block(self, role, fn):
        e = self.e
        lab = e.newlabel("Lr")
        e.salu(f"s_cbranch_vcc{'z' if role == 1 else 'nz'} {lab}")
        p = e.pos
        fn()
        e.label(lab)
        e.pos = p
        e.m0w = p

    def dma_ops(self, L):
        e = self.e
        A = L.addr
        role = L.stream
        g = L.kw["goff"]
        so = S_SO[0]
        if L.kind == "X":
            cfg = (SRD_X, DD[3:5], " nt" if self.opt.xnt else "", S_U4096, 2048, 40960)
        elif L.kind == "K":
            cfg = (SRD_K, DD[0:3], self.nt, S_U6144, 3072, 3072)
        elif L.kind == "V":
            cfg = (SRD_V, DD[3:6], self.nt, S_U6144, 3072, 3072)
        elif L.kind == "WQ":
            cfg = (SRD_WQ, DD[0:3], self.wnt, S_U6144, 3072, 98304)
        else:
            cfg = (SRD_WO, DD[0:3], self.wnt, S_U6144, 3072, 15360)
        srd, D, nt, sb, lstep, gstep = cfg
        ops = []
        for h in range(2):
            def half(h=h):
                def body():
                    e.salu(f"s_add_u32 m0, {sb}, {A + h * lstep}", [sb], ["m0"])
                    e.salu(f"s_mov_b32 {so}, {g + h * gstep}", [], [so])
                    for p, d in enumerate(D):
                        if not self.opt.nodma:
                            e.I(f"buffer_load_dwordx4 {d}, {srd}, {so} offen offset:{p * 1024}{nt} lds",
                                [d, srd, so, "m0"], [], "dma")
                        self.vm[role] += 1
                    if h == 1:
                        L.seq = self.vm[role]
                self.role_block(role, body)
            ops.append((3 + len(D), half))
        return ops

    def pick_loads(self, caps, maxn=99):
        out = []
        while len(out) < maxn:
            cands = []
            for sid in (0, 1):
                st = self.streams[sid]
                i = self.next_load[sid]
                if i >= len(st):
                    continue
                live = sum(1 for L in st[:i] if not L.freed)
                if live >= caps[sid]:
                    continue
                if st[i].kind == "WO" and not self.wo_ready:
                    continue
                cands.append(st[i])
            cands.sort(key=lambda L: L.cons)
            done = False
            for L in cands:
                win = L.win() if callable(L.win) else L.win
                addr = self.alloc(L.size, win, top=(L.kind == "V"))
                if addr is not None:
                    L.addr = addr
                    L.kw["xb"] = self.xbase_load
                    self.next_load[L.stream] += 1
                    out.append(L)
                    done = True
                    break
            if not done:
                break
        return out

    def drain_prio(self):
        while self.prio:
            self.prio.pop(0)[1]()

    def sync(self, need, freed, caps):
        e = self.e
        self.drain_prio()
        for L in need:
            assert L.seq is not None, ("load not issued in time", L.kind, L.kw)
        n = 0
        if need:
            role = need[0].stream
            w = min(self.vm[role] - L.seq for L in need)
            if not self.opt.nowait:
                self.role_block(role, lambda: e.salu(f"s_waitcnt vmcnt({min(63, w)})"))
                n += 2
        if not self.opt.nobar:
            e.salu("s_barrier")
            n += 1
        for L in freed:
            self.release(L.addr, L.size)
            L.freed = True
        for L in self.pick_loads(caps, self.opt.maxissue):
            self.prio += self.dma_ops(L)
        return n

    def read_frag(self, st, m):
        e = self.e
        if self.opt.noread:
            return 0
        F = FR[m % NFR]
        k = st.kind
        A = st.loads[0].addr
        n = 2
        if k == "K":
            e.ds_read_b128(F, AK[m & 3], A - KB + (m >> 2) * 128)
            n = 1
        elif k == "V":
            ks2, Tt = m // 6, m % 6
            for ee in range(2):
                e.ds_read_tr(F.sub(2 * ee, 2), AV[Tt & 1], A - VB + (16 * ks2 + 8 * ee) * 384 + (Tt >> 1) * 128)
        elif k == "QP":
            ks2, Tt = m // 6, m % 6
            if m in (0, 6):
                XL = st.loads[1]
                assert XL.kw["xb"] == self.xbase, "x window mismatch"
                e.ds_read_b128(XF[ks2], AW[2 + ks2], XL.addr - self.xbase)
                n = 3
            for ee in range(2):
                e.ds_read_tr(F.sub(2 * ee, 2), AW[Tt & 1], A + (16 * ks2 + 4 * ee) * 384 + (Tt >> 1) * 128)
        elif k == "OP":
            ks, Tt = m // 4, m % 4
            for ee in range(2):
                e.ds_read_tr(F.sub(2 * ee, 2), AW[Tt], A + ks * 4096 + ee * 1024)
        return n

    def do_mfma(self, st, m):
        e = self.e
        if self.opt.nomfma:
            self.nm += 1
            return
        F = FR[m % NFR]
        k = st.kind
        if k == "K":
            S = SP[st.kw["buf"]]
            c = S if m else (None if st.kw["j"] <= 1 else NEGM)
            e.mfma(S, F, QF[st.kw["head"]].sub(4 * m, 4), c)
        elif k == "V":
            ks2, Tt = m // 6, m % 6
            Pf = SP[st.kw["buf"]].sub(8 * ks2, 4)
            first = st.kw["first"] and ks2 == 0
            e.mfma(OACC[Tt], F, Pf, None if first else OACC[Tt])
        elif k == "QP":
            ks2, Tt = m // 6, m % 6
            acc = st.kw["acc"][Tt]
            first = st.kw["first"] and ks2 == 0
            e.mfma(acc, F, XF[ks2], None if first else acc)
        elif k == "OP":
            ks, Tt = m // 4, m % 4
            acc = st.kw["acc"][Tt]
            first = st.kw["first"] and ks == 0
            B = QF[st.kw["head"]].sub(4 * (3 * st.kw["j"] + ks), 4)
            e.mfma(acc, F, B, None if first else acc)
        self.nm += 1

    def add_job(self, fn, cost=1, delay=0, gate=None, tag=None):
        if self.opt.nojobs:
            return
        if self.opt.novalu and not (cost == 2 and isinstance(tag, tuple) and tag[0] == "out") and tag != "pf":
            return
        self.jobs.append((self.nm + delay, cost, fn, gate, tag))

    def fill(self, budget):
        while self.prio and budget >= self.opt.minblk:
            c, f = self.prio.pop(0)
            f()
            budget -= c
        while self.jobs and budget > 0:
            av, cost, fn, gate, tag = self.jobs[0]
            if av > self.nm or cost > budget:
                break
            if gate is not None and gate not in self.gates:
                break
            self.jobs.pop(0)
            fn()
            budget -= cost

    def flush_jobs(self):
        n = 0
        while self.jobs:
            _, _, fn, gate, _ = self.jobs.pop(0)
            assert gate is None or gate in self.gates, gate
            fn()
            n += 1
        self.exposed += n

    def flush_tag(self, tag):
        idx = -1
        for i, j in enumerate(self.jobs):
            if j[4] == tag:
                idx = i
        n = 0
        for _ in range(idx + 1):
            _, _, fn, gate, _ = self.jobs.pop(0)
            assert gate is None or gate in self.gates, (gate, tag)
            fn()
            n += 1
        if n:
            self.e.comment(f"flushed {n} jobs for {tag}")
            self.exposed += n

    def run_stages(self, stages, caps_fn):
        e = self.e
        B = self.opt.budget
        first = stages[0]
        self.sync(first.loads, [], caps_fn(0))
        for m in range(NFR):
            self.read_frag(first, m)
        prev = None
        for si, st in enumerate(stages):
            nxt = stages[si + 1] if si + 1 < len(stages) else None
            for fn in st.pre:
                fn()
            for m in range(12):
                for fn in st.prem.get(m, []):
                    fn()
                if m % 3 == 0:
                    regs = []
                    for mm in range(m, m + 3):
                        regs += FR[mm % NFR].regs()
                    if st.kind == "QP":
                        regs += XF[m // 6].regs()
                    e.wait_lds_for(regs)
                self.do_mfma(st, m)
                used = 0
                if m + NFR < 12:
                    used += self.read_frag(st, m + NFR)
                if m == 11 - NFR:
                    for fn in st.mid:
                        fn()
                    used += self.sync(nxt.loads if nxt else [], prev.loads if prev else [], caps_fn(si + 1))
                elif m + NFR >= 12 and nxt is not None:
                    used += self.read_frag(nxt, m + NFR - 12)
                if (m + 1) % 3 == 0:
                    used += 1
                self.fill(B - used)
            for fn in st.post:
                fn()
            prev = st
        self.drain_prio()

    def softmax_jobs(self, buf, first, tag, gate, addneg=False):
        e = self.e
        S = SP[buf]
        t0, t1 = V_T[0], V_T[1]

        def J(fn, **kw):
            self.add_job(fn, tag=tag, **kw)
        if addneg:
            for i in range(16):
                J(lambda i=i: e.valu("v_add_f32", S[i], S[i], NEGM[i]), delay=2 if i == 0 else 0)
        J(lambda: e.valu("v_max3_f32", t0, S[0], S[1], S[2]), delay=2)
        J(lambda: e.valu("v_max3_f32", t1, S[3], S[4], S[5]))
        J(lambda: e.valu("v_max3_f32", t0, t0, S[6], S[7]))
        J(lambda: e.valu("v_max3_f32", t1, t1, S[8], S[9]))
        J(lambda: e.valu("v_max3_f32", t0, t0, S[10], S[11]))
        J(lambda: e.valu("v_max3_f32", t1, t1, S[12], S[13]))
        J(lambda: e.valu("v_max3_f32", t0, t0, S[14], S[15]))
        J(lambda: e.valu("v_max_f32", t0, t0, t1))
        if first:
            J(lambda: e.valu("v_mov_b32", t1, t0))
            J(lambda: e.valu("v_mov_b32", V_L[0], 0))
            J(lambda: e.valu("v_mov_b32", V_L[1], 0))
            J(lambda: e.I(f"v_permlane32_swap_b32 {t0}, {t1}", [t0, t1], [t0, t1], "perm"))
            J(lambda: e.valu("v_max_f32", t0, t0, t1))
            for i in range(16):
                J(lambda i=i: e.valu("v_sub_f32", NEGM[i], 0, t0))
            for i in range(16):
                J(lambda i=i: e.valu("v_sub_f32", S[i], S[i], t0))
        else:
            def decide():
                e.I(f"v_cmp_lt_f32 {S_CMP}, {S_THR}, {t0}", [t0, S_THR], [S_CMP], "valu")
                lr, lb = e.newlabel("Lrare"), e.newlabel("Lback")
                e.salu(f"s_cmp_lg_u64 {S_CMP}, 0")
                e.salu(f"s_cbranch_scc1 {lr}")
                e.label(lb)
                self.rare.append((lr, lb, buf))
            J(decide, cost=3, gate=gate)
        for i in range(16):
            J(lambda i=i: e.valu("v_exp_f32", S[i], S[i], k="trans"), cost=2)
            if i >= 1:
                J(lambda i=i: e.valu("v_add_f32", V_L[(i - 1) & 1], V_L[(i - 1) & 1], S[i - 1]))
            if i == 9:
                for jj in range(4):
                    J(lambda jj=jj: e.valu("v_cvt_pk_bf16_f32", S[jj], S[2 * jj], S[2 * jj + 1]))
        J(lambda: e.valu("v_cvt_pk_bf16_f32", S[8], S[8], S[9]))
        J(lambda: e.valu("v_add_f32", V_L[1], V_L[1], S[15]))
        for jj in range(1, 4):
            J(lambda jj=jj: e.valu("v_cvt_pk_bf16_f32", S[8 + jj], S[8 + 2 * jj], S[8 + 2 * jj + 1]))

    def emit_rare_blocks(self):
        e = self.e
        t0, t1, t2 = V_T[0], V_T[1], V_T[2]
        for lr, lb, buf in self.rare:
            e.label(lr)
            e.salu(f"s_call_b64 {S_RET}, L_rareA{buf}")
            e.salu(f"s_branch {lb}")
        for lr, lb in self.rareB:
            e.label(lr)
            e.salu(f"s_call_b64 {S_RET}, L_rareB")
            e.salu(f"s_branch {lb}")
        for buf in range(2):
            if not any(b == buf for _, _, b in self.rare):
                continue
            S = SP[buf]
            e.label(f"L_rareA{buf}")
            e.nop(16)
            e.valu("v_mov_b32", t1, t0)
            e.I(f"v_permlane32_swap_b32 {t0}, {t1}", [t0, t1], [t0, t1], "perm")
            e.valu("v_max3_f32", t0, t0, t1, 0)
            e.valu("v_exp_f32", t2, Neg(t0), k="trans")
            for i in range(16):
                e.valu("v_sub_f32", S[i], S[i], t0)
            for i in range(16):
                e.valu("v_sub_f32", NEGM[i], NEGM[i], t0)
            e.valu("v_mul_f32", V_L[0], V_L[0], t2)
            e.valu("v_mul_f32", V_L[1], V_L[1], t2)
            e.valu("v_mul_f32", V_ALPHA, V_ALPHA, t2)
            e.salu(f"s_mov_b32 {S_FLAG}, 1", [], [S_FLAG])
            e.nop(4)
            e.salu(f"s_setpc_b64 {S_RET}")
        if self.rareB:
            e.label("L_rareB")
            e.nop(16)
            for Tt in range(6):
                for i in range(16):
                    e.valu("v_mul_f32", OACC[Tt][i], OACC[Tt][i], V_ALPHA)
            e.valu("v_mov_b32", V_ALPHA, 1.0)
            e.salu(f"s_mov_b32 {S_FLAG}, 0", [], [S_FLAG])
            e.nop(4)
            e.salu(f"s_setpc_b64 {S_RET}")

    def rescale_check(self):
        e = self.e
        lr, lb = e.newlabel("LrB"), e.newlabel("LbB")
        e.salu(f"s_cmp_lg_u32 {S_FLAG}, 0", [S_FLAG], ["scc"])
        e.salu(f"s_cbranch_scc1 {lr}")
        e.label(lb)
        self.rareB.append((lr, lb))

    def _run(self, ops, as_jobs, tag, delay_idx=0):
        for i, f in enumerate(ops):
            if as_jobs:
                self.add_job(f, delay=2 if i == delay_idx else 0, tag=tag)
            else:
                f()

    def fin_q(self, acc, head, as_jobs=False, tag=None, tiles=range(6)):
        e = self.e
        ops = []
        k = 0
        for Tt in tiles:
            for a1 in range(2):
                for jj in range(4):
                    s0, s1 = acc[Tt][8 * a1 + 2 * jj], acc[Tt][8 * a1 + 2 * jj + 1]
                    dst = QF[head][4 * (2 * Tt + a1) + jj]
                    ta, tb = V_T[4 + (k % 3) * 2], V_T[5 + (k % 3) * 2]
                    k += 1
                    if acc[Tt].f == "a":
                        ops.append(lambda ta=ta, s0=s0: e.valu("v_accvgpr_read_b32", ta, s0))
                        ops.append(lambda tb=tb, s1=s1: e.valu("v_accvgpr_read_b32", tb, s1))
                        ops.append(lambda ta=ta: e.valu("v_mul_f32", ta, S_C, ta))
                        ops.append(lambda tb=tb: e.valu("v_mul_f32", tb, S_C, tb))
                    else:
                        ops.append(lambda ta=ta, s0=s0: e.valu("v_mul_f32", ta, S_C, s0))
                        ops.append(lambda tb=tb, s1=s1: e.valu("v_mul_f32", tb, S_C, s1))
                    ops.append(lambda ta=ta, tb=tb: e.valu("v_cvt_pk_bf16_f32", ta, ta, tb))
                    ops.append(lambda ta=ta, dst=dst: e.valu("v_accvgpr_write_b32", dst, ta))
        self._run(ops, as_jobs, tag)

    def fin_o(self, head, as_jobs=False, tag=None):
        e = self.e
        t0, t1 = V_RINV, V_T[1]
        ops = []
        ops.append(lambda: e.valu("v_add_f32", t0, V_L[0], V_L[1]))
        ops.append(lambda: e.valu("v_mov_b32", t1, t0))
        ops.append(lambda: e.I(f"v_permlane32_swap_b32 {t0}, {t1}", [t0, t1], [t0, t1], "perm"))
        ops.append(lambda: e.valu("v_add_f32", t0, t0, t1))
        ops.append(lambda: e.valu("v_rcp_f32", t0, t0, k="trans"))
        k = 0
        for Tt in range(6):
            for a1 in range(2):
                for jj in range(4):
                    s0, s1 = OACC[Tt][8 * a1 + 2 * jj], OACC[Tt][8 * a1 + 2 * jj + 1]
                    tc = V_T[4 + (k % 4)]
                    k += 1
                    dst = QF[head][4 * (2 * Tt + a1) + jj]
                    ops.append(lambda s0=s0: e.valu("v_mul_f32", s0, s0, t0))
                    ops.append(lambda s1=s1: e.valu("v_mul_f32", s1, s1, t0))
                    ops.append(lambda tc=tc, s0=s0, s1=s1: e.valu("v_cvt_pk_bf16_f32", tc, s0, s1))
                    ops.append(lambda tc=tc, dst=dst: e.valu("v_accvgpr_write_b32", dst, tc))
        self._run(ops, as_jobs, tag, delay_idx=5)

    def pack_jobs(self, acc, c, tag):
        e = self.e
        k = 0
        for Tt in range(4):
            for r in range(8):
                s0, s1 = acc[Tt][2 * r], acc[Tt][2 * r + 1]
                ta, tb = V_T[4 + (k % 3) * 2], V_T[5 + (k % 3) * 2]
                dst = STASH[c][8 * Tt + r]
                self.add_job(lambda ta=ta, s0=s0: e.valu("v_accvgpr_read_b32", ta, s0), delay=2 if k == 0 else 0, tag=tag)
                self.add_job(lambda tb=tb, s1=s1: e.valu("v_accvgpr_read_b32", tb, s1), tag=tag)
                self.add_job(lambda ta=ta, tb=tb: e.valu("v_cvt_pk_bf16_f32", ta, ta, tb), tag=tag)
                self.add_job(lambda ta=ta, dst=dst: e.valu("v_accvgpr_write_b32", dst, ta), tag=tag)
                k += 1

    def unpack_jobs(self, acc, c, tag):
        e = self.e
        for Tt in range(4):
            for r in range(8):
                d0, d1 = acc[Tt][2 * r], acc[Tt][2 * r + 1]
                src_ = STASH[c][8 * Tt + r]
                self.add_job(lambda d0=d0, src_=src_: e.valu("v_accvgpr_read_b32", d0, src_), tag=tag)
                self.add_job(lambda d0=d0, d1=d1: e.valu("v_and_b32", d1, 0xffff0000, d0), tag=tag)
                self.add_job(lambda d0=d0: e.valu("v_lshlrev_b32", d0, 16, d0), tag=tag)

    def out_jobs(self, acc, c, tag):
        e = self.e
        first = True
        k = 0
        for Tt in range(4):
            for a1 in range(2):
                if acc[Tt].f == "a":
                    data = OUTT[k % 2]
                    k += 1
                else:
                    data = acc[Tt].sub(8 * a1, 4)
                for jj in range(4):
                    s0, s1 = acc[Tt][8 * a1 + 2 * jj], acc[Tt][8 * a1 + 2 * jj + 1]
                    d = data[jj]
                    if acc[Tt].f == "a":
                        ta, tb = V_T[4 + 2 * (jj % 2)], V_T[5 + 2 * (jj % 2)]
                        self.add_job(lambda ta=ta, s0=s0: e.valu("v_accvgpr_read_b32", ta, s0), delay=2 if first else 0, tag=tag)
                        self.add_job(lambda tb=tb, s1=s1: e.valu("v_accvgpr_read_b32", tb, s1), tag=tag)
                        self.add_job(lambda d=d, ta=ta, tb=tb: e.valu("v_cvt_pk_bf16_f32", d, ta, tb), tag=tag)
                    else:
                        self.add_job(lambda d=d, s0=s0, s1=s1: e.valu("v_cvt_pk_bf16_f32", d, s0, s1), delay=2 if first else 0, tag=tag)
                    first = False

                def st(Tt=Tt, a1=a1, data=data):
                    off = (c * 8 + Tt * 2 + a1) * 1024
                    e.salu(f"s_mov_b32 {S_ST}, {off}", [], [S_ST])
                    e.I(f"buffer_store_dwordx4 {data}, {V_ST}, {SRD_WS}, {S_ST} offen{self.snt}", [data, V_ST], [], "vstore")
                    self.vm[0] += 1
                    self.vm[1] += 1
                self.add_job(st, cost=2, tag=tag)

    def stamp(self, name, real=False):
        if not self.opt.prof:
            return
        e = self.e
        i = len(self.stamps)
        assert i < 34
        self.stamps.append(name)
        e.salu("s_memrealtime s[90:91]" if real else "s_memtime s[90:91]")
        e.salu("s_waitcnt lgkmcnt(0)")
        e.lds = []
        e.salu(f"s_mov_b32 s{50 + i}, s90")

    def prof_out(self):
        if not self.opt.prof:
            return
        e = self.e
        e.salu("s_load_dwordx2 s[92:93], s[0:1], 96")
        e.salu("s_waitcnt lgkmcnt(0)")
        e.salu("s_add_u32 s92, s92, 0x8000000")
        e.salu("s_addc_u32 s93, s93, 0")
        e.salu("s_mov_b32 s94, 0x1000000")
        e.salu("s_mov_b32 s95, 0x20000")
        e.salu(f"s_lshl_b32 {S_T[0]}, s2, 2", [], [S_T[0]])
        e.salu(f"s_add_u32 {S_T[0]}, {S_T[0]}, {S_WAVE}", [], [S_T[0]])
        e.salu(f"s_lshl_b32 {S_T[0]}, {S_T[0]}, 8", [], [S_T[0]])
        e.valu("v_mov_b32", V_T[1], 0)
        for i in range(len(self.stamps)):
            e.valu("v_mov_b32", V_T[0], s(50 + i))
            e.I(f"buffer_store_dword {V_T[0]}, {V_T[1]}, s[92:95], {S_T[0]} offen offset:{4 * i}", [V_T[0], V_T[1]], [], "vstore")
            e.nop(2)
        e.salu("s_waitcnt vmcnt(0)")
        open(self.opt.out + ".stamps", "w").write("\n".join(self.stamps))

    def prologue(self):
        e = self.e
        P = S_PTR
        e.salu("s_cmp_ge_u32 s2, 256")
        e.salu("s_cbranch_scc1 L_end")
        e.salu(f"s_load_dwordx16 s[{P}:{P + 15}], s[0:1], 0")
        e.salu(f"s_load_dwordx4 s[{P + 16}:{P + 19}], s[0:1], 64")
        e.salu(f"s_load_dwordx2 s[{P + 20}:{P + 21}], s[0:1], 96")
        t = S_T
        e.salu(f"s_and_b32 {t[0]}, s2, 7")
        e.salu(f"s_lshr_b32 {t[1]}, s2, 3")
        e.salu(f"s_lshr_b32 {t[2]}, {t[0]}, 2")
        e.salu(f"s_and_b32 {t[3]}, {t[0]}, 3")
        e.salu(f"s_lshl_b32 {t[3]}, {t[3]}, 2")
        e.salu(f"s_and_b32 {t[4]}, {t[1]}, 3")
        e.salu(f"s_add_u32 {t[3]}, {t[3]}, {t[4]}")
        e.salu(f"s_lshr_b32 {t[4]}, {t[1]}, 2")
        L, T0, T1, T2, T3 = V_T[0], V_T[1], V_T[2], V_T[3], V_T[4]
        IDX, RR, POS = V_T[6], V_T[7], V_T[8]
        e.valu("v_lshrrev_b32", T0, 6, V_TID)
        e.valu("v_and_b32", L, 63, V_TID)
        e.I(f"v_readfirstlane_b32 {S_WAVE}, {T0}", [T0], [S_WAVE], "rfl")
        e.salu(f"s_and_b32 {S_U}, {S_WAVE}, 1", [S_WAVE], [S_U])
        e.salu(f"s_mul_i32 {S_U6144}, {S_U}, 6144")
        e.salu(f"s_lshl_b32 {S_U4096}, {S_U}, 12")
        e.salu(f"s_lshl_b32 {S_W2048}, {S_WAVE}, 11")
        e.salu(f"s_mov_b32 {S_C}, {f2u(SCALE):#x}")
        e.salu(f"s_mov_b32 {S_THR}, {f2u(THRESH):#x}")
        e.salu(f"s_mov_b32 {S_FLAG}, 0")
        e.salu(f"s_cmp_ge_u32 {S_WAVE}, 2")
        e.salu("s_cselect_b64 vcc, -1, 0")
        lkv, ldone = e.newlabel("Lkv"), e.newlabel("Lpd")

        def idx_rp(p):
            e.valu("v_add_u32", IDX, 64 * p, L)
            e.valu("v_mul_u32_u24", RR, 2731, IDX)
            e.valu("v_lshrrev_b32", RR, 16, RR)
            e.valu("v_mul_u32_u24", T0, 24, RR)
            e.valu("v_sub_u32", POS, IDX, T0)
            e.valu("v_bfe_u32", T1, RR, 1, 1)
            e.valu("v_lshlrev_b32", T1, 2, T1)
            e.valu("v_xor_b32", T1, T1, POS)
            e.valu("v_lshlrev_b32", T1, 4, T1)
            if p:
                e.valu("v_subrev_u32", T1, 1024 * p, T1)
        e.salu(f"s_cbranch_vccnz {lkv}")
        e.salu(f"s_mul_i32 {t[5]}, {S_U}, 196608")
        for p in range(3):
            idx_rp(p)
            e.valu("v_mul_u32_u24", T0, 12288, RR)
            e.valu("v_add3_u32", DD[p], T0, T1, t[5])
        e.valu("v_lshrrev_b32", T0, 2, L)
        e.valu("v_mul_u32_u24", T0, 1280, T0)
        e.valu("v_bfe_u32", T1, L, 4, 2)
        e.valu("v_and_b32", T2, 3, L)
        e.valu("v_xor_b32", T1, T1, T2)
        e.valu("v_lshlrev_b32", T1, 4, T1)
        e.salu(f"s_mul_i32 {t[5]}, {S_U}, 81920")
        e.valu("v_add3_u32", DD[3], T0, T1, t[5])
        e.valu("v_add_u32", DD[4], 20480 - 1024, DD[3])
        e.valu("v_mov_b32", DD[5], 0)
        e.salu(f"s_branch {ldone}")
        e.label(lkv)
        e.salu(f"s_lshl_b32 {t[6]}, {S_U}, 2")
        for p in range(3):
            idx_rp(p)
            e.valu("v_mul_u32_u24", T3, 384, RR)
            e.valu("v_add3_u32", DD[3 + p], T3, T1, S_U6144)
            e.valu("v_bfe_u32", T1, RR, 1, 2)
            e.valu("v_or_b32", T1, t[6], T1)
            e.valu("v_xor_b32", T1, T1, POS)
            e.valu("v_lshlrev_b32", T1, 4, T1)
            if p:
                e.valu("v_subrev_u32", T1, 1024 * p, T1)
            e.valu("v_add3_u32", DD[p], T3, T1, S_U6144)
        e.label(ldone)
        e.fence()
        e.salu("s_waitcnt lgkmcnt(0)")
        e.salu(f"s_cmp_eq_u32 {t[2]}, 0")
        for srd, off in ((SRD_X, 0), (SRD_K, 2), (SRD_V, 4), (SRD_WQ, 6), (SRD_WO, 8)):
            e.salu(f"s_cselect_b32 {srd[0]}, s{P + off}, s{P + off + 10}")
            e.salu(f"s_cselect_b32 {srd[1]}, s{P + off + 1}, s{P + off + 11}")
        e.salu(f"s_mul_i32 {t[6]}, {t[3]}, 768")
        e.salu(f"s_add_u32 {SRD_WQ[0]}, {SRD_WQ[0]}, {t[6]}")
        e.salu(f"s_addc_u32 {SRD_WQ[1]}, {SRD_WQ[1]}, 0")
        e.salu(f"s_sub_u32 {SRD_WQ[2]}, 7864320, {t[6]}")
        e.salu(f"s_mov_b32 {SRD_WQ[3]}, 0x20000")
        e.salu(f"s_mul_i32 {t[6]}, {t[4]}, 143360")
        e.salu(f"s_add_u32 {SRD_X[0]}, {SRD_X[0]}, {t[6]}")
        e.salu(f"s_addc_u32 {SRD_X[1]}, {SRD_X[1]}, 0")
        e.salu(f"s_sub_u32 {SRD_X[2]}, 1146880, {t[6]}")
        e.salu(f"s_mov_b32 {SRD_X[3]}, 0x20000")
        e.salu(f"s_lshl_b32 {t[5]}, {t[4]}, 4")
        e.salu(f"s_add_u32 {t[5]}, {t[5]}, {t[3]}")
        e.salu(f"s_mul_i32 {t[6]}, {t[5]}, 393216")
        for srd in (SRD_K, SRD_V):
            e.salu(f"s_add_u32 {srd[0]}, {srd[0]}, {t[6]}")
            e.salu(f"s_addc_u32 {srd[1]}, {srd[1]}, 0")
            e.salu(f"s_mov_b32 {srd[2]}, 393216")
            e.salu(f"s_mov_b32 {srd[3]}, 0x20000")

    def prologue2(self):
        e = self.e
        P = S_PTR
        t = S_T
        e.salu(f"s_mul_i32 {t[6]}, {t[3]}, 491520")
        e.salu(f"s_add_u32 {SRD_WO[0]}, {SRD_WO[0]}, {t[6]}")
        e.salu(f"s_addc_u32 {SRD_WO[1]}, {SRD_WO[1]}, 0")
        e.salu(f"s_mov_b32 {SRD_WO[2]}, 491520")
        e.salu(f"s_mov_b32 {SRD_WO[3]}, 0x20000")
        e.salu(f"s_mov_b32 {SRD_WS[0]}, s{P + 20}")
        e.salu(f"s_mov_b32 {SRD_WS[1]}, s{P + 21}")
        e.salu(f"s_lshl_b32 {t[6]}, {t[2]}, 7")
        e.salu(f"s_add_u32 {t[6]}, {t[6]}, {t[5]}")
        e.salu(f"s_mul_i32 {t[6]}, {t[6]}, {PART_BYTES}")
        e.salu(f"s_add_u32 {SRD_WS[0]}, {SRD_WS[0]}, {t[6]}")
        e.salu(f"s_addc_u32 {SRD_WS[1]}, {SRD_WS[1]}, 0")
        e.salu(f"s_mov_b32 {SRD_WS[2]}, {PART_BYTES}")
        e.salu(f"s_mov_b32 {SRD_WS[3]}, 0x20000")
        L, T0, T1, T2, T3, T4, HH, RRr = V_T[0], V_T[1], V_T[2], V_T[3], V_T[4], V_T[5], V_T[6], V_T[7]
        e.valu("v_and_b32", L, 63, V_TID)
        e.valu("v_lshrrev_b32", HH, 5, L)
        e.valu("v_bfe_u32", RRr, L, 2, 2)
        e.valu("v_bfe_u32", T0, L, 4, 1)
        e.valu("v_lshlrev_b32", T0, 5, T0)
        e.valu("v_and_b32", T1, 1, L)
        e.valu("v_lshl_or_b32", T0, T1, 4, T0)
        e.valu("v_bfe_u32", T1, L, 1, 1)
        e.valu("v_lshl_or_b32", T0, T1, 3, T0)
        e.valu("v_bfe_u32", T1, L, 3, 1)
        e.valu("v_lshl_or_b32", T2, T1, 6, T0)
        e.valu("v_lshl_add_u32", T3, HH, 3, RRr)
        e.valu("v_mul_u32_u24", T4, 384, T3)
        e.valu("v_add_u32", AW[0], T4, T2)
        e.valu("v_xor_b32", AW[1], 64, AW[0])
        e.valu("v_and_b32", T0, 31, L)
        e.valu("v_xor_b32", T1, RRr, HH)
        e.valu("v_lshlrev_b32", T4, 6, T0)
        e.valu("v_lshl_or_b32", T4, T1, 4, T4)
        e.salu(f"s_add_u32 {t[7]}, {S_W2048}, {XBA}")
        e.valu("v_add_u32", AW[2], t[7], T4)
        e.valu("v_xor_b32", AW[3], 32, AW[2])
        e.valu("v_lshl_add_u32", T3, HH, 2, RRr)
        e.valu("v_mul_u32_u24", T3, 384, T3)
        e.valu("v_add3_u32", AV[0], T3, T2, 0)
        e.valu("v_add_u32", AV[0], VB, AV[0])
        e.valu("v_xor_b32", AV[1], 64, AV[0])
        e.valu("v_bfe_u32", T1, L, 1, 2)
        e.valu("v_bfe_u32", T2, L, 4, 1)
        e.valu("v_lshl_or_b32", T1, T2, 2, T1)
        e.valu("v_xor_b32", T1, T1, HH)
        e.valu("v_mul_u32_u24", T2, 384, T0)
        e.valu("v_lshl_or_b32", AK[0], T1, 4, T2)
        e.valu("v_add_u32", AK[0], KB, AK[0])
        for j in range(1, 4):
            e.valu("v_xor_b32", AK[j], j << 5, AK[0])
        e.valu("v_mov_b32", V_ALPHA, 1.0)
        e.valu("v_lshlrev_b32", T1, 4, L)
        e.salu(f"s_mul_i32 {t[7]}, {S_WAVE}, {PART_WAVE}")
        e.valu("v_add_u32", V_ST, t[7], T1)
        e.salu(f"s_lshl_b32 {t[7]}, {S_WAVE}, 5")
        e.valu("v_add_u32", T0, t[7], T0)
        e.salu(f"s_movk_i32 {t[7]}, 112")
        e.I(f"v_cmp_le_u32 {S_CMP}, {t[7]}, {T0}", [T0], [S_CMP], "valu")
        e.valu("v_mov_b32", T1, 0x7ff00000)
        e.I(f"v_cndmask_b32 {V_ST}, {V_ST}, {T1}, {S_CMP}", [V_ST, T1, S_CMP], [V_ST], "valu")

    def pf_setup(self):
        e = self.e
        t = S_T
        L, T0, IDX, RR = V_T[0], V_T[1], V_T[2], V_T[3]
        e.valu("v_and_b32", L, 63, V_TID)
        e.valu("v_lshlrev_b32", V_PF[0], 4, L)
        for p in range(3):
            e.valu("v_add_u32", IDX, 64 * p, L)
            e.valu("v_mul_u32_u24", RR, 2731, IDX)
            e.valu("v_lshrrev_b32", RR, 16, RR)
            e.valu("v_mul_u32_u24", T0, 24, RR)
            e.valu("v_sub_u32", T0, IDX, T0)
            e.valu("v_mul_u32_u24", RR, 12288, RR)
            e.valu("v_lshl_add_u32", V_PF[1 + p], T0, 4, RR)
        e.salu(f"s_mul_i32 {S_PF[0]}, {t[4]}, {80 * 12288}")
        e.salu(f"s_mul_i32 {t[6]}, {S_U}, {40 * 12288}")
        e.salu(f"s_add_u32 {S_PF[0]}, {S_PF[0]}, {t[6]}")
        e.salu(f"s_and_b32 {t[7]}, {t[3]}, 3")
        e.salu(f"s_mul_i32 {t[7]}, {t[7]}, 35840")
        e.salu(f"s_mul_i32 {t[6]}, {S_U}, 17920")
        e.salu(f"s_add_u32 {S_PF[1]}, {t[7]}, {t[6]}")
        e.salu(f"s_mul_i32 {S_PF[2]}, {t[4]}, 30720")
        e.salu(f"s_mul_i32 {t[6]}, {S_U}, 15360")
        e.salu(f"s_add_u32 {S_PF[2]}, {S_PF[2]}, {t[6]}")

    def pf(self, what, now=False):
        e = self.e
        pnt = " nt" if self.opt.pnt else ""
        so = S_PF[3]
        groups = []
        if what in ("wq0", "wq1"):
            hb = 384 if what == "wq1" else 0
            for k in range(5):
                groups.append((S_PF[0], hb + 8 * k * 12288, [(V_PF[1 + p], SRD_WQ, 0) for p in range(3)]))
        elif what == "x":
            for k in range(0, 18, 4):
                groups.append((S_PF[1], k * 1024, [(V_PF[0], SRD_X, i * 1024) for i in range(min(4, 18 - k))]))
        else:
            hb = 192 * 1280 if what == "wo1" else 0
            for k in range(0, 15, 4):
                groups.append((S_PF[2], hb + k * 1024, [(V_PF[0], SRD_WO, i * 1024) for i in range(min(4, 15 - k))]))

        def emit_group(gr):
            base, add, lds = gr
            e.salu(f"s_add_u32 {so}, {base}, {add}", [], [so])
            for vo, srd, io in lds:
                e.I(f"buffer_load_dwordx4 {V_PFD}, {vo}, {srd}, {so} offen offset:{io}{pnt}", [vo], [], "vmem")
                self.vm[1] += 1
        if now:
            self.role_block(1, lambda: [emit_group(gr) for gr in groups])
        else:
            for gr in groups:
                self.add_job(lambda gr=gr: self.role_block(1, lambda: emit_group(gr)), cost=min(self.opt.budget - 2, 2 + len(gr[2])), tag="pf")

    def switch_x_window(self):
        e = self.e
        e.valu("v_subrev_u32", AW[2], XBA, AW[2])
        e.valu("v_subrev_u32", AW[3], XBA, AW[3])
        self.xbase = 0

    def setup_wo_dma(self):
        e = self.e

        def body():
            L, T0, T1, T2 = DD[1], DD[2], DD[3], DD[4]
            e.valu("v_and_b32", L, 63, V_TID)
            e.valu("v_lshrrev_b32", T0, 4, L)
            e.valu("v_lshlrev_b32", T1, 2, T0)
            e.valu("v_and_b32", T2, 15, L)
            e.valu("v_xor_b32", T1, T1, T2)
            e.valu("v_lshlrev_b32", T1, 4, T1)
            e.valu("v_mul_u32_u24", T0, 1280, T0)
            e.salu(f"s_mul_i32 {S_T[7]}, {S_U}, 30720")
            e.valu("v_add3_u32", DD[0], T0, T1, S_T[7])
            e.valu("v_add_u32", DD[1], 4096, DD[0])
            e.valu("v_add_u32", DD[2], 8192, DD[0])
        self.role_block(0, body)
        self.wo_ready = True

    def setup_wo_read(self):
        e = self.e
        L, T0, T1, T3 = AW[1], AW[2], V_T[10], V_T[11]
        e.valu("v_and_b32", L, 63, V_TID)
        e.valu("v_bfe_u32", T0, L, 4, 1)
        e.valu("v_lshlrev_b32", T0, 5, T0)
        e.valu("v_and_b32", T1, 1, L)
        e.valu("v_lshl_or_b32", T0, T1, 4, T0)
        e.valu("v_bfe_u32", T1, L, 1, 1)
        e.valu("v_lshl_or_b32", T0, T1, 3, T0)
        e.valu("v_bfe_u32", T1, L, 2, 2)
        e.valu("v_lshl_or_b32", T0, T1, 6, T0)
        e.valu("v_lshrrev_b32", T3, 5, L)
        e.valu("v_lshl_add_u32", T3, T3, 3, T1)
        e.valu("v_lshl_or_b32", AW[0], T3, 8, T0)
        for j in range(1, 4):
            e.valu("v_xor_b32", AW[j], j << 6, AW[0])


OUTT = [v(64, 4), v(68, 4)]


def build(opt):
    g = Gen(opt)
    g.so_flip = 0
    g.wo_ready = False
    g.kvlo = 102400
    g.xbase_load = XBA
    e = g.e
    W, KV = 0, 1

    def mk(kind, stream, size, win, **kw):
        L = Load(kind, stream, size, win, **kw)
        g.streams[stream].append(L)
        return L

    WWIN = (0, 61440)

    def qp_stage(head, sidx, acc):
        L = mk("WQ", W, 12288, WWIN, goff=head * 384 + sidx * 32 * 12288)
        X = mk("X", W, 8192, (XBA, 102400) if head == 0 else WWIN, goff=sidx * 64, head=head)
        return Stage("QP", [L, X], acc=acc, first=(sidx == 0), head=head, i=sidx)

    def k_stage(head, j):
        L = mk("K", KV, 12288, lambda: (max(KB, g.kvlo), KB + 61440), goff=(head * 16 + j) * 12288)
        return Stage("K", [L], head=head, buf=j & 1, j=j)

    def v_stage(head, j):
        L = mk("V", KV, 12288, (VB, VB + 61440), goff=(head * 16 + j) * 12288)
        return Stage("V", [L], head=head, buf=j & 1, j=j, first=(j == 0))

    def op_stage(head, c, j, acc, first):
        L = mk("WO", W, 12288, WWIN, goff=(head * 192 + 48 * j) * 1280 + c * 256)
        return Stage("OP", [L], head=head, c=c, j=j, acc=acc, first=first)

    ph1 = [qp_stage(0, i, OACC) for i in range(20)]

    def attn(head, wstages, tmpl):
        out = []
        wi = list(wstages)
        for it in range(4):
            b = 4 * it
            cnt = {"K": 0, "V": 0}
            for ch in tmpl.split(",")[it] if "," in tmpl else tmpl:
                if ch == "W":
                    if wi:
                        out.append(wi.pop(0)())
                    continue
                j = b + cnt[ch]
                cnt[ch] += 1
                if ch == "K":
                    st = k_stage(head, j)
                    st.post.append(lambda j=j: g.softmax_jobs(j & 1, j == 0, ("sm", head, j), ("v", head, j - 1), addneg=(j == 1)))
                else:
                    st = v_stage(head, j)
                    st.pre.append(lambda j=j: g.flush_tag(("sm", head, j)))
                    if j > 0:
                        st.pre.append(lambda: g.rescale_check())
                    st.pre.append(lambda j=j: g.gates.add(("v", head, j)))
                out.append(st)
        assert not wi
        return out

    def qp1(i):
        st = qp_stage(1, i, QPACC)
        if i == 19:
            st.post.append(lambda: g.fin_q(QPACC, 1, as_jobs=True, tag="finq1"))
            st.mid.append(lambda: g.setup_wo_read())
        return st

    NE = opt.nearly

    def op0(i):
        c, j = i // 4, i % 4
        acc = EACC[c] if NE <= 2 else WACC
        st = op_stage(0, c, j, acc, j == 0)
        if i == 0:
            st.pre.append(lambda: g.flush_tag("fino0"))
        if NE > 2:
            if j == 0 and c > 0:
                st.pre.append(lambda: g.flush_tag(("pack", c - 1)))
            if j == 3 and c < NE - 1:
                st.post.append(lambda: g.pack_jobs(WACC, c, ("pack", c)))
        return st

    ph2 = attn(0, [(lambda i=i: qp1(i)) for i in range(20)], opt.tmpl)
    for Tt in range(6):
        ph2[0].prem[2 * Tt] = [lambda Tt=Tt: g.fin_q(OACC, 0, tiles=[Tt])]
    lastv = [st for st in ph2 if st.kind == "V"][-1]
    lastv.post.append(lambda: g.fin_o(0, as_jobs=True, tag="fino0"))
    tmpl2 = {0: "KKVKVKVV", 1: "KKVKVKVWV", 2: "KKVKWVKVWV", 3: "KKWVKWVKVWV", 4: "KKWVKWVKWVWV"}[NE]
    ph3 = attn(1, [(lambda i=i: op0(i)) for i in range(4 * NE)], tmpl2)
    ph3[0].pre.insert(0, lambda: g.flush_tag("finq1"))
    firstv = [st for st in ph3 if st.kind == "V"][0]
    firstv.pre.insert(0, lambda: g.flush_tag("fino0"))
    ph4 = []
    late = list(range(NE, 5))
    seq = []
    n = 0
    for c in late:
        seq.append((c, (ACCA, ACCB)[n & 1], [0, 1], None))
        n += 1
    if NE <= 2:
        for c in range(NE):
            seq.append((c, EACC[c], [1], None))
    else:
        seq.append((NE - 1, WACC, [1], None))
        for c in range(NE - 1):
            seq.append((c, (ACCA, ACCB)[n & 1], [1], c))
            n += 1
    firstop = True
    prev_same = {}
    chunk_first = []
    for c, acc, heads, unp in seq:
        for hi, head in enumerate(heads):
            for j in range(4):
                st = op_stage(head, c, j, acc, first=(j == 0 and hi == 0 and len(heads) == 2))
                if firstop:
                    st.pre.append(lambda: g.flush_jobs())
                    st.pre.append(lambda: g.fin_o(1, as_jobs=True, tag="fino1"))
                    firstop = False
                if head == 1 and j == 0:
                    st.pre.append(lambda: g.flush_tag("fino1"))
                if j == 0 and hi == 0:
                    if unp is not None:
                        prevst = chunk_first[-1]
                        pc = prev_same.get(id(acc))
                        def q(acc=acc, unp=unp, pc=pc):
                            g.flush_tag("fino1")
                            if pc is not None:
                                g.flush_tag(("out", pc))
                            g.unpack_jobs(acc, unp, ("unp", unp))
                        prevst.pre.append(q)
                        st.pre.append(lambda unp=unp: g.flush_tag(("unp", unp)))
                    elif id(acc) in prev_same:
                        st.pre.append(lambda pc=prev_same[id(acc)]: g.flush_tag(("out", pc)))
                    chunk_first.append(st)
                if acc is ACCB and j == 0 and hi == 0:
                    st.pre.append(lambda: g.flush_tag("fino1"))
                if j == 3 and head == 1:
                    st.post.append(lambda c=c, acc=acc: g.out_jobs(acc, c, ("out", c)))
                ph4.append(st)
        prev_same[id(acc)] = c
    allst = ph1 + ph2 + ph3 + ph4
    for i, st in enumerate(allst):
        for L in st.loads:
            L.cons = i
    ph1[-1].mid.append(lambda: g.switch_x_window())

    orig_pick = g.pick_loads

    def pick2(caps, maxn=99):
        out = []
        while len(out) < maxn:
            st = g.streams[0]
            i = g.next_load[0]
            if i < len(st) and st[i].kind == "X":
                g.xbase_load = XBA if st[i].kw["head"] == 0 else 0
            r = orig_pick(caps, 1)
            if not r:
                break
            out += r
        return out
    g.pick_loads = pick2

    g.prologue()
    g.stamp("real0", real=True)
    g.stamp("pro")
    if opt.pf:
        g.pf_setup()
        g.pf("wq0", now=True)
        g.pf("x", now=True)
        ph1[opt.pfq1].mid.append(lambda: g.pf("wq1"))
        ph2[opt.pfo0].mid.append(lambda: g.pf("wo0"))
        ph3[opt.pfo1].mid.append(lambda: g.pf("wo1"))
    for L in g.pick_loads({0: 2 * opt.wcap0, 1: opt.kv0}):
        for c, f in g.dma_ops(L):
            f()
    g.prologue2()
    ph1[0].pre.append(lambda: g.stamp("qp0_first"))
    ph1[10].pre.append(lambda: g.stamp("qp0_half"))
    ph2[0].pre.insert(0, lambda: g.stamp("qp0_end"))
    for ph, nm in ((ph2, "u1"), (ph3, "u2")):
        for st in ph:
            if st.kind == "K" and st.kw["j"] % 4 == 0:
                st.pre.append(lambda nm=nm, j=st.kw["j"]: g.stamp(f"{nm}_it{j // 4}"))
    ph3[0].pre.insert(0, lambda: g.stamp("u1_end"))
    ph4[0].pre.insert(0, lambda: g.stamp("u2_end"))
    for i in range(0, len(ph4), 8):
        ph4[i].pre.append(lambda i=i: g.stamp(f"op_{i}"))
    nq = len(ph1) + len(ph2)

    def caps(si):
        if not g.wo_ready:
            st = g.streams[0]
            i = g.next_load[0]
            if i < len(st) and st[i].kind == "WO" and not g.prio:
                g.setup_wo_dma()
        xa_left = any(L.kind == "X" and L.kw["head"] == 0 and L.addr is None for L in g.streams[0])
        if not xa_left:
            g.kvlo = 0
        if si < 16:
            return {0: 2 * opt.wcap0, 1: 99 if si >= opt.kvstart else 0}
        if si < nq:
            return {0: 2 * opt.wcap, 1: 99}
        return {0: 5, 1: 99}

    g.run_stages(allst, caps)
    g.stamp("mfma_end")
    g.flush_jobs()
    e.salu("s_waitcnt vmcnt(0)")
    g.stamp("end")
    g.stamp("real1", real=True)
    g.prof_out()
    print("exposed flushed jobs:", g.exposed)
    e.label("L_end")
    e.salu("s_endpgm")
    g.emit_rare_blocks()
    return g


def build_reduce(opt):
    e = Em()
    e.salu("s_cmp_ge_u32 s2, 640")
    e.salu("s_cbranch_scc1 R_end")
    e.salu("s_load_dwordx2 s[4:5], s[0:1], 80")
    e.salu("s_load_dwordx2 s[8:9], s[0:1], 96")
    e.salu("s_mov_b32 s12, 0x6666667")
    e.salu("s_mul_hi_u32 s13, s2, s12")
    e.salu("s_mul_i32 s14, s13, 40")
    e.salu("s_sub_u32 s14, s2, s14")
    e.valu("v_lshrrev_b32", v(1), 6, v(0))
    e.valu("v_and_b32", v(2), 63, v(0))
    e.valu("v_mul_u32_u24", v(3), PART_WAVE, v(1))
    e.valu("v_lshl_add_u32", v(3), v(2), 4, v(3))
    e.salu("s_lshl_b32 s15, s14, 10")
    e.valu("v_add_u32", v(3), s(15), v(3))
    e.valu("v_and_b32", v(4), 31, v(2))
    e.valu("v_lshl_add_u32", v(4), v(1), 5, v(4))
    e.I("v_cmp_le_u32 vcc, 112, v4", [v(4)], ["vcc"], "valu")
    e.valu("v_mov_b32", v(5), 0x7ff00000)
    e.I("v_cndmask_b32 v3, v3, v5, vcc", [v(3), v(5), "vcc"], [v(3)], "valu")
    e.salu("s_and_b32 s16, s13, 7")
    e.salu("s_lshr_b32 s17, s13, 3")
    e.salu("s_mul_i32 s16, s16, 286720")
    e.salu("s_mul_i32 s17, s17, 1280")
    e.salu("s_add_u32 s16, s16, s17")
    e.salu("s_lshl_b32 s17, s14, 5")
    e.salu("s_add_u32 s16, s16, s17")
    e.valu("v_mul_u32_u24", v(6), 2560, v(4))
    e.valu("v_lshrrev_b32", v(7), 5, v(2))
    e.valu("v_lshl_add_u32", v(6), v(7), 4, v(6))
    e.valu("v_add_u32", v(6), s(16), v(6))
    e.I("v_cndmask_b32 v6, v6, v5, vcc", [v(6), v(5), "vcc"], [v(6)], "valu")
    e.salu("s_waitcnt lgkmcnt(0)")
    e.salu("s_mov_b32 s6, 2293760")
    e.salu("s_mov_b32 s7, 0x20000")
    e.salu(f"s_mul_i32 s18, s13, {16 * PART_BYTES}")
    e.salu("s_add_u32 s8, s8, s18")
    e.salu("s_addc_u32 s9, s9, 0")
    e.salu(f"s_mov_b32 s10, {16 * PART_BYTES}")
    e.salu("s_mov_b32 s11, 0x20000")
    rnt = " nt" if opt.rnt else ""
    for hp in range(16):
        e.salu(f"s_mov_b32 s{20 + hp}, {hp * PART_BYTES}")
    for hp in range(16):
        e.I(f"buffer_load_dwordx4 v[{16 + 4 * hp}:{19 + 4 * hp}], v3, s[8:11], s{20 + hp} offen{rnt}", [v(3)], [], "vmem")
    acc = [v(8 + i) for i in range(8)]
    for hp in range(16):
        e.salu(f"s_waitcnt vmcnt({15 - hp})")
        for jj in range(4):
            x = v(16 + 4 * hp + jj)
            if hp == 0:
                e.valu("v_lshlrev_b32", acc[2 * jj], 16, x)
                e.valu("v_and_b32", acc[2 * jj + 1], 0xffff0000, x)
            else:
                e.valu("v_lshlrev_b32", v(80), 16, x)
                e.valu("v_and_b32", x, 0xffff0000, x)
                e.valu("v_add_f32", acc[2 * jj], acc[2 * jj], v(80))
                e.valu("v_add_f32", acc[2 * jj + 1], acc[2 * jj + 1], x)
    for jj in range(4):
        e.valu("v_cvt_pk_bf16_f32", v(16 + jj), acc[2 * jj], acc[2 * jj + 1])
    e.I("buffer_store_dwordx4 v[16:19], v6, s[4:7], 0 offen", [v(16, 4), v(6)], [], "vstore")
    e.label("R_end")
    e.salu("s_endpgm")
    return e


def kd(name, nv, ns, acc):
    return [".p2align 6", f".amdhsa_kernel {name}",
            f"  .amdhsa_next_free_vgpr {nv}", f"  .amdhsa_next_free_sgpr {ns}", f"  .amdhsa_accum_offset {acc}",
            "  .amdhsa_group_segment_fixed_size 0", "  .amdhsa_kernarg_size 104", "  .amdhsa_user_sgpr_count 2",
            "  .amdhsa_user_sgpr_kernarg_segment_ptr 1", "  .amdhsa_system_sgpr_workgroup_id_x 1",
            ".end_amdhsa_kernel"]


def wrap(g, opt):
    e = g.e
    main = f"{NAME}_kernel"
    if opt.noreduce:
        hdr = [f"; @launch grid=(256,1,1) block=(256,1,1) lds={LDS_BYTES}"]
    else:
        hdr = [f"; @launch kernel={main} grid=(256,1,1) block=(256,1,1) lds={LDS_BYTES}",
               "; @launch kernel=reduce_kernel grid=(640,1,1) block=(256,1,1) lds=0"]
    hdr += ["; generated by gen/kgen3.py (own generator script)",
            '.amdgcn_target "amdgcn-amd-amdhsa--gfx950"', ".text", f".globl {main}", ".p2align 8",
            f".type {main},@function", f"{main}:"]
    body = "\n".join(hdr) + "\n" + e.text()
    ftr = ['.section .rodata,"a"'] + kd(main, 512, 96, 256)
    if not opt.noreduce:
        r = build_reduce(opt)
        body += ".globl reduce_kernel\n.p2align 8\n.type reduce_kernel,@function\nreduce_kernel:\n" + r.text()
        ftr += kd("reduce_kernel", 84, 48, 84)
    return body + "\n".join(ftr) + "\n"


if __name__ == "__main__":
    ap = argparse.ArgumentParser()
    ap.add_argument("out")
    ap.add_argument("--nt", type=int, default=1)
    ap.add_argument("--wnt", type=int, default=0)
    ap.add_argument("--snt", type=int, default=0)
    ap.add_argument("--rnt", type=int, default=0)
    ap.add_argument("--budget", type=int, default=6)
    ap.add_argument("--prof", action="store_true")
    ap.add_argument("--noreduce", action="store_true")
    for o in ("nodma", "nowait", "nobar", "nojobs", "noread", "nowaitw", "nomfma", "novalu"):
        ap.add_argument("--" + o, action="store_true")
    ap.add_argument("--wcap0", type=int, default=5)
    ap.add_argument("--wcap", type=int, default=3)
    ap.add_argument("--kv0", type=int, default=0)
    ap.add_argument("--maxissue", type=int, default=3)
    ap.add_argument("--nearly", type=int, default=2)
    ap.add_argument("--tmpl", default="KKWVWKWVWKWVWV,KKWVWKWVWKWVWV,KKWVWKWVWKWVWV,KKWVKWVKVV")
    ap.add_argument("--pf", type=int, default=1)
    ap.add_argument("--pnt", type=int, default=0)
    ap.add_argument("--pfq1", type=int, default=6)
    ap.add_argument("--pfo0", type=int, default=36)
    ap.add_argument("--pfo1", type=int, default=20)
    ap.add_argument("--xnt", type=int, default=0)
    ap.add_argument("--minblk", type=int, default=3)
    ap.add_argument("--kvstart", type=int, default=0)
    opt = ap.parse_args()
    g = build(opt)
    open(opt.out, "w").write(wrap(g, opt))
    print("instructions:", g.e.ninst)
```
